```python
import torch

def _softmax(x, axis=-1):
    return torch.softmax(x, dim=axis)
def _gelu(x):
    return torch.nn.functional.gelu(x, approximate="tanh")
def _silu(x):
    return torch.nn.functional.silu(x)
def _sigmoid(x):
    return torch.sigmoid(x)
def _layernorm(x, axis=-1, eps=1e-5):
    m = x.mean(dim=axis, keepdim=True)
    v = x.var(dim=axis, keepdim=True, unbiased=False)
    return (x - m) / torch.sqrt(v + eps)
def _scatter_add(tgt, idx, src, axis=0):
    return tgt.clone().index_add_(axis, idx, src)
def _segment_sum(src, seg, n):
    out = torch.zeros((n,) + src.shape[1:], dtype=src.dtype)
    return out.index_add_(0, seg, src)
def _pad(x, pw):
    flat = tuple(v for pair in reversed(pw) for v in pair)
    return torch.nn.functional.pad(x, flat)

kernel_name = 'gated_mix__ssm_conv_s5__dense_activation_gelu__prompt'

def setup_inputs():

    _w = (lambda a: (lambda t: t.to(torch.bfloat16) if t.is_floating_point() else t)(torch.as_tensor(a)))
    def _A_setup():
        B, S, D = 1, 2048, 1024
        P = D
        Lambda_re = -0.5 * (lambda _x: torch.exp(torch.as_tensor(_x)))((lambda *s: torch.randn(*s, dtype=torch.bfloat16) * 0.2)(P))
        Lambda_im = (lambda *s: torch.randn(*s, dtype=torch.bfloat16) * 0.8)(P) * 1.0
        B_re = (lambda *s: torch.randn(*s, dtype=torch.bfloat16) * 0.2)(P, D) * (D ** -0.5)
        B_im = (lambda *s: torch.randn(*s, dtype=torch.bfloat16) * 0.2)(P, D) * (D ** -0.5)
        C_re = (lambda *s: torch.randn(*s, dtype=torch.bfloat16) * 0.2)(D, P) * (P ** -0.5)
        C_im = (lambda *s: torch.randn(*s, dtype=torch.bfloat16) * 0.2)(D, P) * (P ** -0.5)
        log_dt = (lambda *s: torch.randn(*s, dtype=torch.bfloat16) * 0.2)(P) * 0.3 - 2.0
        Dskip = (lambda *s: torch.randn(*s, dtype=torch.bfloat16) * 0.05)(D)
        return {
            "x": _w((lambda *s: torch.randn(*s, dtype=torch.bfloat16) * 0.05)(B, S, D)),
            "Lambda_re": _w(Lambda_re),
            "Lambda_im": _w(Lambda_im),
            "B_re": _w(B_re),
            "B_im": _w(B_im),
            "C_re": _w(C_re),
            "C_im": _w(C_im),
            "log_dt": _w(log_dt),
            "Dskip": _w(Dskip),
        }
    _A_in = _A_setup()

    def _B_setup():
        B, S, D, F = 1, 2048, 1024, 3584
        return {
            "x": _w((lambda *s: torch.randn(*s, dtype=torch.bfloat16) * 0.05)(B, S, D)),
            "w1": _w((lambda *s: torch.randn(*s, dtype=torch.bfloat16) * 3.2)(D, F) * (D ** -0.5)),
            "b1": _w((lambda *s: torch.randn(*s, dtype=torch.bfloat16) * 3.2)(F) * 0.01),
            "w2": _w((lambda *s: torch.randn(*s, dtype=torch.bfloat16) * 0.1)(F, D) * (F ** -0.5)),
            "b2": _w((lambda *s: torch.randn(*s, dtype=torch.bfloat16) * 0.2)(D) * 0.01),
        }
    _B_in = _B_setup()

    return {
        "A_x": _A_in["x"],
        "A_Lambda_re": _A_in["Lambda_re"],
        "A_Lambda_im": _A_in["Lambda_im"],
        "A_B_re": _A_in["B_re"],
        "A_B_im": _A_in["B_im"],
        "A_C_re": _A_in["C_re"],
        "A_C_im": _A_in["C_im"],
        "A_log_dt": _A_in["log_dt"],
        "A_Dskip": _A_in["Dskip"],
        "B_x": _B_in["x"],
        "B_w1": _B_in["w1"],
        "B_b1": _B_in["b1"],
        "B_w2": _B_in["w2"],
        "B_b2": _B_in["b2"],
        "gate_w": _w((lambda *s: torch.randn(*s, dtype=torch.bfloat16) * 0.05)(1024) * 16.0),
    }

def reference(A_x, A_Lambda_re, A_Lambda_im, A_B_re, A_B_im, A_C_re, A_C_im, A_log_dt, A_Dskip, B_x, B_w1, B_b1, B_w2, B_b2, gate_w):
    def _A_ref(x, Lambda_re, Lambda_im, B_re, B_im, C_re, C_im, log_dt, Dskip):
        Bsz, L, H = x.shape
        Lam = Lambda_re + 1j * Lambda_im
        Bmat = B_re + 1j * B_im
        Cmat = C_re + 1j * C_im
        dt = torch.exp(log_dt)
        Lam_bar = torch.exp(dt * Lam)
        B_bar = ((Lam_bar - 1.0) / Lam)[:, None] * Bmat
        Bu = torch.einsum("bld,pd->blp", x + 0j, B_bar)
        h = torch.zeros_like(Bu[:, 0, :])
        hs = []
        for t in range(L):
            h = Lam_bar[None, :] * h + Bu[:, t, :]
            hs.append(h)
        hseq = torch.stack(hs, 1)
        y = 2.0 * torch.einsum("blp,dp->bld", hseq, Cmat).real + x * Dskip[None, None, :]
        return y

    def _B_ref(x, w1, b1, w2, b2):
        h = torch.einsum("bsd,df->bsf", x, w1) + b1
        h = _gelu(h)
        return torch.einsum("bsf,fd->bsd", h, w2) + b2

    x = A_x
    g = _sigmoid((x * gate_w).sum(-1, keepdims=True))
    a = _A_ref(x, A_Lambda_re, A_Lambda_im, A_B_re, A_B_im, A_C_re, A_C_im, A_log_dt, A_Dskip)
    b = _B_ref(x, B_w1, B_b1, B_w2, B_b2)
    return g * a + (1 - g) * b
```

```python
NAME = "gated_mix__ssm_conv_s5__dense_activation_gelu__prompt"

K_X, K_LRE, K_LIM, K_BRE, K_BIM, K_CRE, K_CIM, K_LOGDT, K_DSKIP, K_BX, K_W1, K_B1, K_W2, K_B2, K_GATE, K_OUT, K_DBG, K_WS = range(18)

class Asm:
    def __init__(self):
        self.lines = []
        self.uid = 0
    def __call__(self, s=""):
        for l in s.split("\n"):
            self.lines.append(l)
        return self
    def i(self, s):
        self.lines.append("    " + s)
    def label(self, name):
        self.lines.append(name + ":")
    def newlabel(self, base="L"):
        self.uid += 1
        return "%s_%d" % (base, self.uid)
    def text(self):
        return "\n".join(self.lines) + "\n"

def header(launches):
    out = []
    for k, g, b, lds in launches:
        out.append("; @launch kernel=%s grid=(%d,%d,%d) block=(%d,%d,%d) lds=%d" % (k, g[0], g[1], g[2], b[0], b[1], b[2], lds))
    out.append('.amdgcn_target "amdgcn-amd-amdhsa--gfx950"')
    out.append(".text")
    return "\n".join(out) + "\n"

def kernel_begin(name):
    return ".globl %s\n.p2align 8\n.type %s,@function\n%s:\n" % (name, name, name)

def descriptor(name, vgpr, sgpr, accum_offset):
    return """.amdhsa_kernel %s
  .amdhsa_next_free_vgpr %d
  .amdhsa_next_free_sgpr %d
  .amdhsa_accum_offset %d
  .amdhsa_group_segment_fixed_size 0
  .amdhsa_kernarg_size 144
  .amdhsa_user_sgpr_count 2
  .amdhsa_user_sgpr_kernarg_segment_ptr 1
  .amdhsa_system_sgpr_workgroup_id_x 1
  .amdhsa_float_denorm_mode_32 3
  .amdhsa_float_denorm_mode_16_64 3
.end_amdhsa_kernel
""" % (name, vgpr, sgpr, accum_offset)

def rodata(descs):
    s = '.section .rodata,"a"\n'
    for d in descs:
        s += ".p2align 6\n" + d
    return s

def srd(a, d, b, nbytes):
    if d != b:
        a.i("s_mov_b32 s%d, s%d" % (d, b))
        a.i("s_mov_b32 s%d, s%d" % (d + 1, b + 1))
    a.i("s_mov_b32 s%d, 0x%x" % (d + 2, nbytes))
    a.i("s_mov_b32 s%d, 0x00020000" % (d + 3))

STAMP_OFF = 0x0F000000
def stamp(a, sbase, j):
    a.i("s_memrealtime s[%d:%d]" % (sbase + 4 * j, sbase + 4 * j + 1))
    a.i("s_memtime s[%d:%d]" % (sbase + 4 * j + 2, sbase + 4 * j + 3))

def stamps_store(a, sbase, n, s_ws, s_wg, vtmp, wgoff=0):
    a.i("s_waitcnt lgkmcnt(0)")
    a.i("v_mov_b32 v%d, s%d" % (vtmp, s_wg))
    a.i("v_lshlrev_b32 v%d, 7, v%d" % (vtmp, vtmp))
    a.i("v_add_u32 v%d, 0x%x, v%d" % (vtmp, STAMP_OFF + wgoff * 128, vtmp))
    for j in range(n):
        for q in range(4):
            a.i("v_mov_b32 v%d, s%d" % (vtmp + 2 + q, sbase + 4 * j + q))
        a.i("global_store_dwordx4 v%d, v[%d:%d], s[%d:%d] offset:%d" % (vtmp, vtmp + 2, vtmp + 5, s_ws, s_ws + 1, 16 * j))
        a.i("s_nop 1")
    a.i("s_waitcnt vmcnt(0)")
```

```python
import sys, struct
from asmlib import *

KN = NAME + "_kernel"

H_OFF = 0
P_OFF = 0x2000000
CB_OFF = 0x3000000
G_OFF = 0x3100000
WS_USED = 0x3200000
X_LDS, B_LDS, W_LDS = 0, 65536, 90112
C_LDS, F_LDS = 0, 98304
T_LDS = 32768
S_WS = 4
S_MI, S_NI, S_J, S_B, S_W, S_PAR = 12, 13, 14, 15, 16, 17
T0, T1, T2 = 18, 19, 3
S_X, S_BS, S_W1, S_W2, S_CRE, S_CIM, S_OUT, S_DBG, S_MB = 20, 24, 28, 32, 36, 40, 44, 48, 52
P_LRE, P_LIM, P_LDT, P_DSK, P_B1, P_B2, P_GW = 56, 58, 60, 62, 64, 66, 68
M_X, M_B, M_W, M_F, M_C = 70, 71, 72, 73, 74
O_K, O_W = 75, 76
S_H = 77
S_HP = 81
S_WT = 85
S_CT = 89
S_WOWN, S_WPAR = 93, 94
O_H = 95
S_SPIN = 96
S_CBO = 97
S_GC = 98
S_ST = 8
BIG = 0x100000

ACC0 = 80
def acc1(nb, e): return ACC0 + (nb * 4 + e) * 4
ACC2 = [80, 96, 112, 128, 160, 192, 224, 240]
def acc2(lam, e): return ACC2[lam] + 4 * e
def ownF(q, e): return 144 + 32 * q + 4 * e
def vq(r, n=4): return "v[%d:%d]" % (r, r + n - 1)
def aq(r, n=4): return "a[%d:%d]" % (r, r + n - 1)
def sq(r, n=4): return "s[%d:%d]" % (r, r + n - 1)
def fl(x): return "0x%08x" % struct.unpack("<I", struct.pack("<f", x))[0]

V_LANE, V_L16 = 0, 1
V_RX, V_RB, V_RW = 2, 4, 6
V_DX, V_DB, V_DW = 8, 16, 18
V_G = 8
V_DF, V_DS, V_DC = 24, 26, 28
V_RF, V_RC = 32, 40
V_OMG, V_GE = 42, 46
V_L1, V_L2, V_L16P, V_L64, V_L512G, V_L16G, V_CO = 50, 54, 58, 62, 66, 70, 74
XF0, WF0, NP = 0, 64, 4
A_SRE, A_SIM, A_H = 96, 112, 128

class Stream:
    def __init__(self, a):
        self.a = a
        self.ds_issued = 0; self.ds_done = 0; self.frag_last = {}
        self.vm_issued = 0; self.vm_done = 0; self.vm_tag = {}
    def i(self, t): self.a.i(t)
    def ds(self, text, frag=None):
        self.a.i(text); self.ds_issued += 1
        if frag is not None: self.frag_last[frag] = self.ds_issued
    def need(self, frags):
        idx = max(self.frag_last[f] for f in frags)
        if idx > self.ds_done:
            n = min(self.ds_issued - idx, 15)
            self.a.i("s_waitcnt lgkmcnt(%d)" % n)
            self.ds_done = self.ds_issued - n
    def ds_all(self):
        if self.ds_done < self.ds_issued:
            self.a.i("s_waitcnt lgkmcnt(0)"); self.ds_done = self.ds_issued
    def vm(self, text, tag=None):
        self.a.i(text); self.vm_issued += 1
        if tag is not None: self.vm_tag[tag] = self.vm_issued
    def vm_wait(self, tags, extra="", force=False):
        idx = max([self.vm_tag[t] for t in tags] + [0])
        if idx > self.vm_done:
            n = min(self.vm_issued - idx, 63)
            self.a.i("s_waitcnt vmcnt(%d)%s" % (n, extra))
            self.vm_done = self.vm_issued - n
        elif extra:
            self.a.i("s_waitcnt%s" % extra)
    def item(self, it):
        k = it[0]
        if k == 'raw':
            for t in it[1].split("\n"):
                if t.endswith(":"): self.a.label(t[:-1])
                else: self.a.i(t)
        elif k == 'vm': self.vm(it[1], it[2])
        elif k == 'ds': self.ds(it[1], it[2])
        elif k == 'needvm': self.vm_wait(it[1])
        elif k == 'resv': pass
        else: raise ValueError(k)

class Gaps:
    def __init__(self, n):
        self.g = [[] for _ in range(n)]
    def place(self, items, lo, hi, maxfill=1):
        n = len(items); pos = lo
        for k, it in enumerate(items):
            a0 = max(pos, lo + (k * (hi - lo)) // n)
            a1 = max(a0 + 1, min(hi, lo + ((k + 1) * (hi - lo)) // n + 1))
            a0 = min(a0, hi - 1); a1 = min(a1, hi)
            best = min(range(a0, a1), key=lambda p: (len(self.g[p]), p))
            self.g[best].append(it)
            pos = best + 1 if (hi - best - 1) >= (n - k - 1) else best
    def emit(self, st, p):
        prev_m0 = False
        for it in self.g[p]:
            if prev_m0 and it[0] == 'vm': st.i("s_nop 0")
            st.item(it)
            if it[0] != 'resv': prev_m0 = it[0] == 'raw' and " m0," in it[1]

def R(t): return ('raw', t)

def p1_dma(kind, s):
    out = []
    if kind == 'x':
        for q in range(8):
            if q % 4 == 0: out.append(R("s_add_u32 m0, s%d, 0x%x" % (M_X, (s % 2) * 32768 + (q // 4) * 4096 + BIG)))
            out.append(('vm', "buffer_load_dwordx4 v%d, %s, s%d offen offset:%d lds" % (V_DX + q, sq(S_X), O_K, (q % 4) * 1024), ('x', s)))
    elif kind == 'b':
        out.append(R("s_add_u32 m0, s%d, 0x%x" % (M_B, (s % 3) * 8192 + BIG)))
        for q in range(2):
            out.append(('vm', "buffer_load_dwordx4 v%d, %s, s%d offen offset:%d lds" % (V_DB + q, sq(S_BS), O_K, q * 1024), ('b', s)))
    else:
        out.append(R("s_add_u32 m0, s%d, 0x%x" % (M_W, (s % 3) * 16384 + BIG)))
        for q in range(4):
            out.append(('vm', "buffer_load_dwordx4 v%d, %s, s%d offen offset:%d lds" % (V_DW + q, sq(S_W1), O_W, q * 1024), ('w', s)))
    return out
def p1_stage(s, order="wbx"):
    out = [R("s_mov_b32 s%d, 0x%x" % (O_K, s * 128)), R("s_mov_b32 s%d, 0x%x" % (O_W, s * 64 * 7168))]
    for k in order: out += p1_dma(k, s)
    return out
def p1_tags(s): return [('x', s), ('b', s), ('w', s)]

FSLOT = [5, 6, 7, 1, 2, 3, 4, 0]
def p2_seq():
    seq = []; ft = []; ct = []
    def F(wbase, wconst, shared, h):
        ft.append(dict(kind='F', idx=len(ft), sreg=wbase, const=wconst, shared=shared))
        seq.append(dict(t='F', tile=ft[-1], h=h))
    def C(srd, seg, slot):
        ct.append(dict(kind='C', idx=len(ct), srd=srd, sreg=S_CT + seg, slot=slot)); return ct[-1]
    def S(tile, rb, h): seq.append(dict(t='S', tile=tile, rb=rb, h=h))
    KB = 32 * 2048
    for q in range(3): F(S_WOWN, q * KB, False, ('v', ownF(q, 0)))
    cre0 = C(S_CRE, 0, 0); cim0 = C(S_CIM, 0, 1)
    S(cre0, 2, ('a', A_SRE)); S(cim0, 2, ('a', A_SIM))
    for q in range(3): F(S_WPAR, q * KB, False, ('ld', S_HP, q * 4096))
    F(S_WT, 3 * KB, True, ('ld', S_H, 3 * 4096))
    for sg in range(1, 4):
        for k in range(7): F(S_WT + sg, k * KB, k == 3, ('ld', S_H + sg, k * 4096))
        if sg == 1:
            S(cre0, 3, ('ld', S_HP + 1, 0)); S(cim0, 3, ('ld', S_HP + 1, 2 * 4096))
        sl = 2 * (sg % 2)
        cre = C(S_CRE, sg, sl); cim = C(S_CIM, sg, sl + 1)
        for k in range(2): S(cre, V_RC + k, ('ld', S_H + sg, (7 + k) * 4096))
        for k in range(2): S(cim, V_RC + k, ('ld', S_H + sg, (9 + k) * 4096))
    assert len(seq) == 44
    for n, k in enumerate(seq):
        t = k['tile']; t.setdefault('first', n // 2); t['last'] = n // 2
    return seq, ft, ct
def unit_items(t, half=None):
    if t['kind'] == 'F':
        v = V_DS if t['shared'] else V_DF
        out = [R("s_add_u32 s%d, s%d, 0x%x" % (O_W, t['sreg'], t['const'] + BIG)),
               R("s_add_u32 m0, s%d, 0x%x" % (M_F, FSLOT[t['idx'] % 8] * 8192 + BIG))]
        for q in range(2):
            out.append(('vm', "buffer_load_dwordx4 v%d, %s, s%d offen offset:%d lds" % (v + q, sq(S_W2), O_W, q * 1024), ('F', t['idx'])))
        return out
    out = [R("s_add_u32 m0, s%d, 0x%x" % (M_C, t['slot'] * 16384 + BIG))]
    for q in (2 * half, 2 * half + 1):
        out.append(('vm', "buffer_load_dwordx4 v%d, %s, s%d offen offset:%d lds" % (V_DC + q, sq(t['srd']), t['sreg'], q * 1024), ('C', t['idx'])))
    return out

def cmul(o, dr, di, ar, ai, br, bi):
    o("v_mul_f32 v%d, v%d, v%d" % (dr, ar, br))
    o("v_mul_f32 v%d, v%d, v%d" % (di, ar, bi))
    o("v_fma_f32 v%d, -v%d, v%d, v%d" % (dr, ai, bi, dr))
    o("v_fmac_f32 v%d, v%d, v%d" % (di, ai, br))
def cfma(o, dr, di, ar, ai, br, bi):
    o("v_fmac_f32 v%d, v%d, v%d" % (dr, ar, br))
    o("v_fmac_f32 v%d, v%d, v%d" % (di, ar, bi))
    o("v_fma_f32 v%d, -v%d, v%d, v%d" % (dr, ai, bi, dr))
    o("v_fmac_f32 v%d, v%d, v%d" % (di, ai, br))
def interleave(*lists):
    out = []
    for k in range(max(map(len, lists))):
        for l in lists:
            if k < len(l): out.append(l[k])
    return out

def gen(stamps=False, mimic=True, outaux="", D1=3, BAR1=9, D2=3, spinmax=1 << 16, dbgstop=None):
    a = Asm()
    a(open("cdna_kernels/%s.s.ref" % NAME).read().split("; Override launch")[0].rstrip("\n"))
    a("; @launch grid=(256,1,1) block=(256,1,1) lds=163840")
    a('.amdgcn_target "amdgcn-amd-amdhsa--gfx950"')
    a(".text")
    a(kernel_begin(KN).rstrip("\n"))
    st = Stream(a); i = a.i
    slow = []
    nstamp = [0]
    def stamp(n):
        if stamps:
            i("s_memrealtime s[8:9]"); i("s_memtime s[10:11]"); i("s_waitcnt lgkmcnt(0)")
            st.ds_done = st.ds_issued
            for q in range(4): i("v_accvgpr_write_b32 a%d, s%d" % (224 + 4 * n + q, 8 + q))
    def spin(name, load, test):
        slow.append((name, load, test))
        return test + "\ns_cbranch_scc0 L_slow_%s\nL_back_%s:" % (name, name)

    i("s_cmp_ge_u32 s2, 256")
    i("s_cbranch_scc1 L_end")
    if stamps:
        i("s_memrealtime s[92:93]"); i("s_memtime s[94:95]")
    i("s_load_dwordx2 s[%d:%d], s[0:1], %d" % (S_X, S_X + 1, K_X * 8))
    i("s_load_dwordx4 s[8:11], s[0:1], %d" % (K_BRE * 8))
    i("s_load_dwordx2 s[%d:%d], s[0:1], %d" % (S_W1, S_W1 + 1, K_W1 * 8))
    i("s_load_dwordx2 s[%d:%d], s[0:1], %d" % (P_B1, P_B1 + 1, K_B1 * 8))
    i("s_load_dwordx2 s[%d:%d], s[0:1], %d" % (S_WS, S_WS + 1, K_WS * 8))
    i("s_load_dwordx4 s[%d:%d], s[0:1], %d" % (P_LRE, P_LRE + 3, K_LRE * 8))
    i("s_load_dwordx4 s[%d:%d], s[0:1], %d" % (P_LDT, P_LDT + 3, K_LOGDT * 8))
    i("s_getpc_b64 s[%d:%d]" % (S_HP + 1, S_HP + 2))
    i("s_lshr_b32 s%d, s2, 3" % T0)
    i("s_lshl_b32 s%d, s%d, 11" % (T0, T0))
    i("v_and_b32 v1, 15, v0")
    i("v_lshl_add_u32 v1, v1, 7, s%d" % T0)
    st.vm("global_load_dword v79, v1, s[%d:%d]" % (S_HP + 1, S_HP + 2))
    i("s_and_b32 s%d, s2, 4" % S_MI)
    i("s_lshr_b32 s%d, s2, 6" % T0)
    i("s_add_u32 s%d, s%d, s%d" % (S_MI, S_MI, T0))
    i("s_and_b32 s%d, s2, 3" % S_B)
    i("s_bfe_u32 s%d, s2, 0x30003" % S_J)
    i("s_lshl3_add_u32 s%d, s%d, s%d" % (S_NI, S_B, S_J))
    i("s_and_b32 s%d, s%d, 1" % (S_PAR, S_J))
    i("v_lshrrev_b32 v1, 6, v0")
    i("v_and_b32 v0, 63, v0")
    i("v_readfirstlane_b32 s%d, v1" % S_W)
    i("v_and_b32 v30, 15, v0")
    i("v_lshrrev_b32 v31, 4, v0")
    i("v_lshrrev_b32 v32, 5, v0")
    i("v_bfe_u32 v33, v0, 3, 2")
    i("v_lshl_add_u32 v32, v32, 4, v33")
    i("v_and_b32 v33, 7, v0")
    i("v_xor_b32 v33, v33, v31")
    i("v_lshlrev_b32 v33, 4, v33")
    i("v_lshl_add_u32 v7, v32, 11, v33")
    i("s_lshl2_add_u32 s%d, s%d, s%d" % (T2, S_MI, S_W))
    i("s_lshl_b32 s%d, s%d, 17" % (T0, T2))
    i("v_add_u32 v7, s%d, v7" % T0)
    i("v_xor_b32 v1, 64, v7")
    for q in range(8):
        off = (32 * (q & 1) + 4 * (q >> 1)) * 2048 - (q % 4) * 1024
        i("v_add_u32 v%d, %d, v%d" % (V_DX + q, off, 1 if q & 1 else 7))
    i("v_lshrrev_b32 v32, 3, v0")
    i("v_lshl_add_u32 v35, v32, 11, v33")
    i("s_and_b32 s%d, s%d, 1" % (T0, S_W))
    i("s_lshl1_add_u32 s%d, s%d, s%d" % (T0, S_NI, T0))
    i("s_lshl_b32 s%d, s%d, 15" % (T0, T0))
    i("v_add_u32 v%d, s%d, v35" % (V_DB, T0))
    i("v_xor_b32 v%d, 64, v%d" % (V_DB + 1, V_DB))
    i("v_add_u32 v%d, %d, v%d" % (V_DB + 1, 8 * 2048 - 1024, V_DB + 1))
    i("s_mul_i32 s%d, s%d, %d" % (T0, S_W, 16 * 7168))
    i("s_mul_i32 s%d, s%d, 224" % (T1, S_NI))
    i("s_add_u32 s%d, s%d, s%d" % (T0, T0, T1))
    i("s_lshl_b32 s%d, s%d, 1" % (T1, S_PAR))
    i("v_bfrev_b32 v34, 1")
    for par in range(2):
        i("v_subrev_u32 v32, %d, v0" % (8 * par))
        i("v_cmp_gt_u32 vcc, 56, v32")
        i("v_mul_u32_u24 v33, 4682, v32")
        i("v_lshrrev_b32 v33, 16, v33")
        i("v_mul_u32_u24 v1, 14, v33")
        i("v_sub_u32 v32, v32, v1")
        i("v_add_u32 v32, s%d, v32" % T1)
        i("v_subrev_u32 v1, 14, v32")
        i("v_min_u32 v32, v32, v1")
        i("v_mul_u32_u24 v33, 7168, v33")
        i("v_lshl_add_u32 v32, v32, 4, v33")
        i("v_add_u32 v32, s%d, v32" % T0)
        for q in (2 * par, 2 * par + 1):
            i("v_add_u32 v33, %d, v32" % (q * (4 * 7168 - 1024)))
            i("v_cndmask_b32 v%d, v34, v33, vcc" % (V_DW + q))
    i("s_lshl_b32 s%d, s%d, 13" % (M_X, S_W))
    i("s_sub_u32 s%d, s%d, 0x%x" % (M_X, M_X, BIG))
    i("s_lshl_b32 s%d, s%d, 11" % (M_B, S_W))
    i("s_add_u32 s%d, s%d, 0x%x" % (M_F, M_B, (F_LDS - BIG) & 0xffffffff))
    i("s_add_u32 s%d, s%d, 0x%x" % (M_B, M_B, (B_LDS - BIG) & 0xffffffff))
    i("s_lshl_b32 s%d, s%d, 12" % (M_W, S_W))
    i("s_add_u32 s%d, s%d, 0x%x" % (M_C, M_W, (C_LDS - BIG) & 0xffffffff))
    i("s_add_u32 s%d, s%d, 0x%x" % (M_W, M_W, (W_LDS - BIG) & 0xffffffff))
    for r, nb in ((S_X, 2048 * 2048), (S_BS, 1024 * 2048), (S_W1, 1024 * 7168)):
        i("s_mov_b32 s%d, 0x%x" % (r + 2, nb)); i("s_mov_b32 s%d, 0x20000" % (r + 3))
    i("s_cmp_lt_u32 s%d, 2" % S_W)
    i("s_waitcnt lgkmcnt(0)")
    i("s_cselect_b32 s%d, s8, s10" % S_BS)
    i("s_cselect_b32 s%d, s9, s11" % (S_BS + 1))
    def emit_seq(items):
        for it in items:
            st.item(it)
            if it[0] == 'raw' and " m0," in it[1]: i("s_nop 0")
    emit_seq(p1_stage(0, "xbw"))
    i("s_load_dwordx2 s[%d:%d], s[0:1], %d" % (S_W2, S_W2 + 1, K_W2 * 8))
    i("s_load_dwordx2 s[%d:%d], s[0:1], %d" % (S_CRE, S_CRE + 1, K_CRE * 8))
    i("s_load_dwordx2 s[%d:%d], s[0:1], %d" % (S_CIM, S_CIM + 1, K_CIM * 8))
    i("s_load_dwordx2 s[%d:%d], s[0:1], %d" % (P_B2, P_B2 + 1, K_B2 * 8))
    i("s_load_dwordx2 s[%d:%d], s[0:1], %d" % (P_GW, P_GW + 1, K_GATE * 8))
    i("s_load_dwordx2 s[%d:%d], s[0:1], %d" % (S_OUT, S_OUT + 1, K_OUT * 8))
    i("s_load_dwordx2 s[%d:%d], s[0:1], %d" % (S_DBG, S_DBG + 1, K_DBG * 8))
    def elast(nb): return 3 if nb % 2 == 0 else 0
    i("s_mul_i32 s%d, s%d, 224" % (T0, S_NI))
    i("s_lshl_b32 s%d, s%d, 5" % (T1, S_PAR))
    i("s_add_u32 s%d, s%d, s%d" % (T1, T1, T0))
    i("v_lshl_add_u32 v32, v31, 3, s%d" % T1)
    i("s_mul_i32 s%d, s%d, 224" % (T1, S_PAR))
    i("v_subrev_u32 v33, s%d, v32" % T1)
    for fb in range(7):
        r = acc1(4 + fb, elast(4 + fb))
        st.vm("global_load_dwordx2 v[%d:%d], v%d, s[%d:%d] offset:%d" % (r + 2, r + 3, 32 if fb < 6 else 33, P_B1, P_B1 + 1, fb * 32), 'b1')
    emit_seq(p1_stage(1, "xbw"))
    i("v_lshrrev_b32 v32, 1, v30")
    i("v_xor_b32 v32, v32, v31")
    i("v_lshlrev_b32 v32, 4, v32")
    i("v_lshl_add_u32 v32, v30, 7, v32")
    i("s_lshl_b32 s%d, s%d, 13" % (T0, S_W))
    i("v_add_u32 v%d, s%d, v32" % (V_RX, T0))
    i("v_xor_b32 v%d, 64, v%d" % (V_RX + 1, V_RX))
    i("v_add_u32 v%d, %d, v32" % (V_RB, B_LDS))
    i("v_xor_b32 v%d, 64, v%d" % (V_RB + 1, V_RB))
    i("v_bfe_u32 v32, v0, 2, 2")
    i("v_mul_u32_u24 v32, 224, v32")
    i("v_and_b32 v33, 3, v0")
    i("v_lshl_add_u32 v32, v33, 3, v32")
    i("v_lshl_add_u32 v32, v31, 11, v32")
    i("v_and_b32 v33, 1, v31")
    i("v_lshl_add_u32 v32, v33, 7, v32")
    i("v_add_u32 v%d, %d, v32" % (V_RW, W_LDS))
    i("v_lshlrev_b32 v%d, 4, v0" % V_L16)
    for r, nb in ((S_WS, WS_USED), (S_W2, 3584 * 2048), (S_CRE, 1024 * 2048), (S_CIM, 1024 * 2048), (S_OUT, 2048 * 4096), (S_DBG, 256), (S_MB, 16384)):
        i("s_mov_b32 s%d, 0x%x" % (r + 2, nb)); i("s_mov_b32 s%d, 0x20000" % (r + 3))
    i("s_lshl_b32 s%d, s%d, 14" % (T0, S_NI))
    i("s_add_u32 s%d, s%d, 0x%x" % (T0, T0, CB_OFF))
    i("s_add_u32 s%d, s%d, s%d" % (S_MB, S_WS, T0))
    i("s_addc_u32 s%d, s%d, 0" % (S_MB + 1, S_WS + 1))
    i("s_sub_u32 s%d, 31, s%d" % (T1, T2))
    i("s_lshl_b32 s%d, s%d, 9" % (T1, T1))
    i("s_add_u32 s%d, s%d, s%d" % (S_CBO, T0, T1))
    if stamps:
        for q in range(4): i("v_accvgpr_write_b32 a%d, s%d" % (224 + q, 92 + q))
    i("s_lshl2_add_u32 s%d, s%d, s%d" % (T0, S_MI, S_B))
    i("s_lshl2_add_u32 s%d, s%d, s%d" % (T0, T0, S_W))
    i("s_mul_i32 s%d, s%d, 180224" % (T0, T0))
    i("s_sub_u32 s%d, s%d, 0x%x" % (T0, T0, BIG))
    i("s_mul_i32 s8, s%d, %d" % (S_B, 896 * 2048))
    i("s_sub_u32 s8, s8, 0x%x" % BIG)
    i("s_lshl_b32 s9, s%d, 9" % S_B)
    for sg in range(4):
        i("s_lshr_b32 s%d, s%d, 1" % (T1, S_J))
        i("s_add_u32 s%d, s%d, %d" % (T1, T1, sg))
        i("s_and_b32 s%d, s%d, 3" % (T1, T1))
        i("s_mul_i32 s10, s%d, 45056" % T1)
        i("s_add_u32 s%d, s%d, s10" % (S_H + sg, T0))
        i("s_mul_i32 s10, s%d, %d" % (T1, 224 * 2048))
        i("s_add_u32 s%d, s8, s10" % (S_WT + sg))
        i("s_lshl_b32 s10, s%d, 7" % T1)
        i("s_add_u32 s%d, s9, s10" % (S_CT + sg))
    i("s_xor_b32 s%d, s%d, 1" % (T1, S_PAR))
    i("s_lshl_b32 s10, s%d, 14" % T1)
    i("s_add_u32 s%d, s%d, s10" % (S_HP, S_H))
    i("s_lshl_b32 s10, s%d, 12" % T1)
    i("s_add_u32 s10, s10, %d" % (7 * 4096))
    i("s_add_u32 s%d, s%d, s10" % (S_HP + 1, S_H))
    i("s_lshl_b32 s10, s%d, 14" % S_PAR)
    i("s_add_u32 s%d, s%d, s10" % (S_HP + 2, S_H))
    i("s_lshl_b32 s10, s%d, 12" % S_PAR)
    i("s_add_u32 s10, s10, %d" % (7 * 4096))
    i("s_add_u32 s%d, s%d, s10" % (S_HP + 3, S_H))
    i("s_lshl_b32 s10, s%d, 18" % S_PAR)
    i("s_add_u32 s%d, s%d, s10" % (S_WOWN, S_WT))
    i("s_lshl_b32 s10, s%d, 18" % T1)
    i("s_add_u32 s%d, s%d, s10" % (S_WPAR, S_WT))
    i("s_mov_b32 s%d, %s" % (S_GC, fl(-0.1029432397)))
    i("s_mov_b32 s%d, %s" % (S_GC + 1, fl(-2.302208198)))
    i("s_mov_b32 s%d, %d" % (S_SPIN, spinmax))
    i("s_waitcnt lgkmcnt(0)")
    st.vm_wait(p1_tags(0) + ['b1'])
    i("s_barrier")
    stamp(1)

    NS = 16
    def xf(s, kh, e): return XF0 + (s % 2) * 32 + (kh * 4 + e) * 4
    def wf(G, kh): return WF0 + (G % NP) * 8 + kh * 4
    def x_read(s, kh, e):
        return ('ds', "ds_read_b128 %s, v%d offset:%d" % (aq(xf(s, kh, e)), V_RX + kh, (s % 2) * 32768 + e * 2048), ('x', s, kh, e))
    def w_reads(G):
        s, nb = divmod(G, 11); out = []
        for kh in range(2):
            r = wf(G, kh)
            if nb < 4:
                out.append(('ds', "ds_read_b128 %s, v%d offset:%d" % (aq(r), V_RB + kh, (s % 3) * 8192 + nb * 2048), ('w', G)))
            else:
                for h in range(2):
                    out.append(('ds', "ds_read_b64_tr_b16 %s, v%d offset:%d" % (aq(r + 2 * h, 2), V_RW, (s % 3) * 16384 + kh * 8192 + h * 1024 + (nb - 4) * 32), ('w', G)))
        return out
    g1 = Gaps(NS * 88)
    for G in range(NS * 11): g1.g[G * 8 + 7].append(('resv',))
    for s in range(NS):
        for nb in range(11):
            G = s * 11 + nb
            if (nb >= D1 or s == 0) and G >= D1: g1.place(w_reads(G), (G - D1) * 8, (G - D1) * 8 + 7)
        if s + 1 < NS:
            b0 = (s * 11 + BAR1) * 8
            wr = [w_reads((s + 1) * 11 + q) for q in range(D1)]
            xs = [x_read(s + 1, kh, e) for e in range(4) for kh in range(2)]
            g1.place(wr[0] + xs[:4] + wr[1] + xs[4:], b0, b0 + 15)
            for q in range(2, D1): g1.place(wr[q], (s + 1) * 88, (s + 1) * 88 + 4)
    for s in range(NS - 2):
        g1.place(p1_stage(s + 2), s * 88 + 8, s * 88 + BAR1 * 8)
    seq, ftiles, ctiles = p2_seq()
    it14 = sum([unit_items(ftiles[k]) for k in range(5)], [])
    it15 = sum([unit_items(ctiles[k], h) for k in range(2) for h in range(2)], []) + unit_items(ftiles[5]) + unit_items(ftiles[6])
    g1.place(it14, 14 * 88 + 8, 14 * 88 + BAR1 * 8)
    g1.place(it15, 15 * 88 + 0, 15 * 88 + 80)
    bg = []
    for fb in range(7):
        r = acc1(4 + fb, elast(4 + fb))
        bg += [R("v_lshlrev_b32 v%d, 16, v%d" % (r, r + 2)), R("v_and_b32 v%d, 0xffff0000, v%d" % (r + 1, r + 2)),
               R("v_lshlrev_b32 v%d, 16, v%d" % (r + 2, r + 3)), R("v_and_b32 v%d, 0xffff0000, v%d" % (r + 3, r + 3))]
    g1.place(bg[:12], 0, 26); g1.place(bg[12:], 26, 50)
    bg = [R("v_lshlrev_b32 v78, 3, v0"), R("v_mov_b32 v64, -1"), R("v_mov_b32 v65, -1"),
          ('vm', "buffer_store_dwordx2 v[64:65], v78, %s, s%d offen sc1" % (sq(S_WS), S_CBO), 'clr'),
          R("s_lshl_b32 s%d, s%d, 5\ns_add_u32 s%d, s%d, s%d" % (T0, S_MI, T0, T0, S_NI)),
          R("s_lshl2_add_u32 s%d, s%d, s%d\ns_lshl_b32 s%d, s%d, 12" % (T0, T0, S_W, T0, T0)),
          R("v_and_b32 v78, 31, v0"), R("v_lshlrev_b32 v78, 4, v78"), R("v_lshrrev_b32 v7, 5, v0"),
          R("v_lshl_add_u32 v7, v7, 11, v78")]
    for q in range(4):
        bg.append(('vm', "buffer_load_dwordx4 %s, v7, %s, s%d offen offset:%d" % (vq(24 + 4 * q), sq(S_X), T0, q * 512), 'gx'))
        bg.append(('vm', "global_load_dwordx4 %s, v78, s[%d:%d] offset:%d" % (vq(40 + 4 * q), P_GW, P_GW + 1, q * 512), 'gx'))
    bg += [R("v_and_b32 v78, 15, v0"), R("s_lshl_b32 s%d, s%d, 6" % (T1, S_NI)), R("v_lshl_add_u32 v78, v78, 1, s%d" % T1)]
    for k, p in enumerate((P_LRE, P_LIM, P_LDT)):
        for cb in range(2):
            bg.append(('vm', "global_load_ushort v%d, v78, s[%d:%d] offset:%d" % (66 + 2 * k + cb, p, p + 1, cb * 32), 'lam'))
    g1.place(bg, 52, 88 + 70)
    bg = [('needvm', ['gx', 'lam'])]
    if mimic:
        bg += [R("v_mov_b32 v64, 0"), R("v_mov_b32 v65, 0x3f803f80")]
        for q in range(16):
            x, w_ = 24 + q, 40 + q
            t = 56 + 4 * (q % 2)
            bg += [R("v_lshlrev_b32 v%d, 16, v%d" % (t, x)), R("v_and_b32 v%d, 0xffff0000, v%d" % (t + 1, x)),
                   R("v_lshlrev_b32 v%d, 16, v%d" % (t + 2, w_)), R("v_and_b32 v%d, 0xffff0000, v%d" % (t + 3, w_)),
                   R("v_mul_f32 v%d, v%d, v%d" % (t, t, t + 2)), R("v_mul_f32 v%d, v%d, v%d" % (t + 1, t + 1, t + 3)),
                   R("v_cvt_pk_bf16_f32 v%d, v%d, v%d" % (t, t, t + 1)),
                   R("v_dot2c_f32_bf16 v64, v%d, v65" % t)]
    else:
        bg += [R("v_mov_b32 v64, 0")]
        for q in range(16): bg.append(R("v_dot2c_f32_bf16 v64, v%d, v%d" % (24 + q, 40 + q)))
    for d in ("quad_perm:[1,0,3,2]", "quad_perm:[2,3,0,1]", "row_half_mirror", "row_mirror"):
        bg.append(R("s_nop 2\nv_add_f32_dpp v64, v64, v64 %s row_mask:0xf bank_mask:0xf" % d))
    bg += [R("v_mov_b32 v65, v64"), R("s_nop 1\nv_permlane16_swap_b32 v64, v65"), R("s_nop 1\nv_add_f32 v64, v64, v65"),
           R("v_cvt_pk_bf16_f32 v64, v64, v64"), R("v_lshlrev_b32 v64, 16, v64"),
           R("v_mul_f32 v64, %s, v64" % fl(-1.4426950408889634)), R("v_exp_f32 v64, v64"), R("s_nop 0\nv_add_f32 v64, 1.0, v64"),
           R("v_rcp_f32 v64, v64"), R("s_nop 0\nv_cvt_pk_bf16_f32 v64, v64, v64"), R("v_lshlrev_b32 v64, 16, v64"),
           R("v_and_b32 v65, 31, v0"), R("v_cmp_eq_u32 vcc, 0, v65"), R("v_lshrrev_b32 v65, 3, v0"), R("v_bfrev_b32 v7, 1"),
           R("s_lshr_b32 s%d, s%d, 9\ns_add_u32 s%d, s%d, 0x%x" % (T0, T0, T0, T0, G_OFF)),
           R("v_cndmask_b32 v65, v7, v65, vcc"),
           ('vm', "buffer_store_dword v64, v65, %s, s%d offen sc1" % (sq(S_WS), T0), 'gst')]
    g1.place(bg, 3 * 88, 7 * 88 - 20)
    bg = [R("v_or_b32 v65, s%d, v0" % S_W), R("v_cmp_eq_u32 vcc, 0, v65"), R("v_mov_b32 v64, 1"), R("v_bfrev_b32 v7, 1"),
          R("s_nop 0\nv_cndmask_b32 v65, v7, v65, vcc")]
    g1.place(bg, 7 * 88, 7 * 88 + 40)
    ARR = 7
    g1.place([('vm', "buffer_atomic_add v64, v65, %s, 0 offen" % sq(S_DBG), 'arr')], ARR * 88 + BAR1 * 8 + 2, ARR * 88 + BAR1 * 8 + 6)
    bg = []
    o = lambda t: bg.append(R(t))
    for cb in range(2):
        for k in range(3): o("v_lshlrev_b32 v%d, 16, v%d" % (24 + 2 * k + cb, 66 + 2 * k + cb))
    for cb in range(2): o("v_mul_f32 v%d, %s, v%d" % (28 + cb, fl(1.4426950408889634), 28 + cb))
    for cb in range(2): o("v_exp_f32 v%d, v%d" % (28 + cb, 28 + cb))
    o("s_nop 0\nv_cvt_pk_bf16_f32 v30, v28, v29")
    o("v_lshlrev_b32 v28, 16, v30"); o("v_and_b32 v29, 0xffff0000, v30")
    for cb in range(2):
        o("v_mul_f32 v%d, v%d, v%d" % (30 + cb, 28 + cb, 24 + cb))
        o("v_mul_f32 v%d, v%d, v%d" % (32 + cb, 28 + cb, 26 + cb))
    for cb in range(2):
        o("v_mul_f32 v%d, %s, v%d" % (30 + cb, fl(1.4426950408889634), 30 + cb))
        o("v_mul_f32 v%d, 0.15915494, v%d" % (32 + cb, 32 + cb))
    o("v_lshrrev_b32 v34, 4, v0"); o("v_cvt_f32_u32 v34, v34")
    o("v_mul_f32 v35, %s, v34" % fl(512.0)); o("v_mul_f32 v34, %s, v34" % fl(16.0))
    for dst, n in ((V_L1, "1.0"), (V_L2, "2.0"), (V_L16P, fl(16.0)), (V_L64, fl(64.0)), (V_L512G, "v35"), (V_L16G, "v34")):
        l = [[], []]
        for cb in range(2):
            t = 36 + 4 * cb
            l[cb] = ["v_mul_f32 v%d, %s, v%d" % (t, n, 30 + cb), "v_mul_f32 v%d, %s, v%d" % (t + 1, n, 32 + cb),
                     "v_exp_f32 v%d, v%d" % (t, t), "v_rndne_f32 v%d, v%d" % (t + 2, t + 1), "v_sub_f32 v%d, v%d, v%d" % (t + 1, t + 1, t + 2),
                     "v_cos_f32 v%d, v%d" % (t + 2, t + 1), "v_sin_f32 v%d, v%d" % (t + 3, t + 1),
                     "v_mul_f32 v%d, v%d, v%d" % (dst + 2 * cb, t, t + 2), "v_mul_f32 v%d, v%d, v%d" % (dst + 2 * cb + 1, t, t + 3)]
        for t in interleave(*l): o(t)
    l = [[], []]
    for cb in range(2):
        t = 36 + 4 * cb; re, im = 24 + cb, 26 + cb; lr, li = V_L1 + 2 * cb, V_L1 + 2 * cb + 1
        l[cb] = ["v_mul_f32 v%d, v%d, v%d" % (t, re, re), "v_fmac_f32 v%d, v%d, v%d" % (t, im, im), "v_rcp_f32 v%d, v%d" % (t, t),
                 "v_add_f32 v%d, -1.0, v%d" % (t + 1, lr), "v_add_f32 v%d, v%d, v%d" % (t, t, t),
                 "v_mul_f32 v%d, v%d, v%d" % (t + 2, t + 1, re), "v_mul_f32 v%d, v%d, v%d" % (t + 3, li, re),
                 "v_fmac_f32 v%d, v%d, v%d" % (t + 2, li, im), "v_fma_f32 v%d, -v%d, v%d, v%d" % (t + 3, t + 1, im, t + 3),
                 "v_mul_f32 v%d, v%d, v%d" % (V_CO + 2 * cb, t + 2, t), "v_mul_f32 v%d, v%d, v%d" % (V_CO + 2 * cb + 1, t + 3, t)]
    for t in interleave(*l): o(t)
    g1.place(bg, 8 * 88, 12 * 88 + 40)
    bg = []
    o = lambda t: bg.append(R(t))
    o("v_lshrrev_b32 v32, 4, v0")
    o("v_bfe_u32 v33, v0, 1, 3")
    o("v_xor_b32 v33, v33, v32")
    o("s_lshl_b32 s%d, s%d, 1" % (T0, S_B))
    o("v_add_u32 v33, s%d, v33" % T0)
    o("v_and_b32 v33, 7, v33")
    o("v_and_b32 v34, 1, v0")
    o("v_lshlrev_b32 v34, 4, v34")
    o("v_lshl_add_u32 v33, v33, 5, v34")
    o("v_lshl_add_u32 v33, v32, 11, v33")
    o("s_lshl_b32 s%d, s%d, 8\nv_add_u32 v33, s%d, v33" % (T0, S_J, T0))
    o("v_xor_b32 v34, 0x80, v33")
    o("s_lshl_b32 s%d, s%d, 14\nv_add_u32 v%d, s%d, v33" % (T0, S_W, V_DF, T0))
    o("s_add_u32 s%d, s%d, %d\nv_add_u32 v%d, s%d, v34" % (T0, T0, 8192 - 1024, V_DF + 1, T0))
    o("s_and_b32 s%d, s%d, 1\ns_lshr_b32 s%d, s%d, 1" % (T0, S_W, T1, S_W))
    o("s_lshl2_add_u32 s%d, s%d, s%d\ns_lshl_b32 s%d, s%d, 13" % (T0, T0, T1, T0, T0))
    o("v_add_u32 v%d, s%d, v33" % (V_DS, T0))
    o("s_add_u32 s%d, s%d, %d\nv_add_u32 v%d, s%d, v34" % (T0, T0, 16384 - 1024, V_DS + 1, T0))
    o("v_and_b32 v33, 7, v0"); o("v_xor_b32 v33, v33, v32"); o("v_lshlrev_b32 v33, 4, v33")
    o("v_lshrrev_b32 v34, 3, v0"); o("v_lshl_add_u32 v33, v34, 11, v33")
    o("s_add_u32 s%d, s%d, s%d\ns_and_b32 s%d, s%d, 3" % (T0, S_W, S_B, T0, T0))
    o("s_lshl2_add_u32 s%d, s%d, s%d\ns_lshl_b32 s%d, s%d, 16" % (T0, S_J, T0, T0, T0))
    o("v_add_u32 v33, s%d, v33" % T0); o("v_xor_b32 v34, 64, v33")
    for q in range(4): o("v_add_u32 v%d, %d, v%d" % (V_DC + q, q * (16384 - 1024), 34 if q & 1 else 33))
    g1.place(bg, 12 * 88 + 42, 13 * 88 + 70)
    ld_arr = "buffer_load_dword v78, off, %s, 0 sc1" % sq(S_DBG)
    g1.place([('vm', ld_arr, 'arrld')], 12 * 88 + 60, 12 * 88 + 66)
    bg = [('needvm', ['arrld']), R(spin("arr", ld_arr, "v_readfirstlane_b32 s%d, v78\ns_nop 0\ns_cmp_eq_u32 s%d, 256" % (T0, T0))),
          R("s_lshl_b32 s%d, s%d, 8\ns_add_u32 s%d, s%d, 0x%x" % (T0, T2, T0, T0, G_OFF)),
          R("v_and_b32 v78, 48, v0"), R("v_lshlrev_b32 v78, 2, v78"),
          R("v_and_b32 v7, 12, v0"), R("v_and_b32 v79, 3, v0"), R("v_lshl_add_u32 v7, v7, 2, v79"), R("v_lshlrev_b32 v7, 2, v7")]
    for q in range(4): bg.append(('vm', "buffer_load_dwordx4 %s, v78, %s, s%d offen offset:%d sc1" % (vq(V_G + 4 * q), sq(S_WS), T0, q * 16), 'gld'))
    for q in range(4): bg.append(('vm', "buffer_load_dword v%d, v7, %s, s%d offen offset:%d sc1" % (V_GE + q, sq(S_WS), T0, q * 16), 'gld'))
    g1.place(bg, 14 * 88, 14 * 88 + 60)

    for e in range(4):
        for kh in range(2): st.item(x_read(0, kh, e))
    for G in range(D1):
        for it in w_reads(G): st.item(it)
    i(".p2align 3")
    t = 0
    for G in range(NS * 11):
        s, nb = divmod(G, 11)
        if nb == BAR1 and s + 1 < NS:
            tags = p1_tags(s + 1)
            if s == 2: tags += ['gx', 'lam']
            if s == ARR: tags += ['gst', 'clr']
            if s == 13: tags += ['arrld']
            st.vm_wait(tags, " lgkmcnt(0)"); st.ds_done = st.ds_issued
            i("s_barrier")
        n = 0
        for e0 in range(4):
            e = e0 if nb % 2 == 0 else 3 - e0
            for k0 in range(2):
                kh = k0 ^ t
                fr = [('w', G)] + ([('x', s, k, ee) for k in range(2) for ee in range(4)] if nb > 0 else [('x', s, 0, e), ('x', s, 1, e)])
                if nb == 0 and e0 in (0, 2): fr += [('x', s, 0, e + 1), ('x', s, 1, e + 1)]
                st.need(fr)
                d = vq(acc1(nb, e)); c = d
                if s == 0 and k0 == 0: c = "0" if nb < 4 else vq(acc1(nb, elast(nb)))
                if nb < 4: i("v_mfma_f32_16x16x32_bf16 %s, %s, %s, %s" % (d, aq(xf(s, kh, e)), aq(wf(G, kh)), c))
                else: i("v_mfma_f32_16x16x32_bf16 %s, %s, %s, %s" % (d, aq(wf(G, kh)), aq(xf(s, kh, e)), c))
                g1.emit(st, G * 8 + n); n += 1
            t ^= 1
    stamp(2)

    RE = [acc1(0, 0), acc1(1, 0)]; IM = [acc1(2, 0), acc1(3, 0)]
    for tau in range(1, 16):
        l = [[], []]
        for cb in range(2):
            cfma(l[cb].append, RE[cb] + tau, IM[cb] + tau, V_L1 + 2 * cb, V_L1 + 2 * cb + 1, RE[cb] + tau - 1, IM[cb] + tau - 1)
        for t_ in interleave(*l): i(t_)
    i("v_lshrrev_b32 v6, 4, v0")
    i("v_cmp_eq_u32 s[8:9], 1, v6"); i("v_cmp_eq_u32 s[10:11], 2, v6"); i("v_cmp_eq_u32 vcc, 3, v6")
    for cb in range(2):
        E = {}
        ra = [32, 33, 34, 35]; rb = [40, 41, 78, 79]
        for comp, src, rr in ((0, RE[cb] + 15, ra), (1, IM[cb] + 15, rb)):
            i("v_mov_b32 v%d, v%d" % (rr[0], src)); i("v_mov_b32 v%d, v%d" % (rr[1], src))
        i("s_nop 0")
        for rr in (ra, rb): i("v_permlane16_swap_b32 v%d, v%d" % (rr[0], rr[1]))
        i("s_nop 0")
        for rr in (ra, rb):
            i("v_mov_b32 v%d, v%d" % (rr[2], rr[0])); i("v_mov_b32 v%d, v%d" % (rr[3], rr[1]))
        i("s_nop 0")
        for rr in (ra, rb):
            i("v_permlane32_swap_b32 v%d, v%d" % (rr[0], rr[2])); i("v_permlane32_swap_b32 v%d, v%d" % (rr[1], rr[3]))
        i("s_nop 0")
        lr, li = V_L16P + 2 * cb, V_L16P + 2 * cb + 1
        for g in range(1, 4): cfma(i, ra[g], rb[g], lr, li, ra[g - 1], rb[g - 1])
        for comp, rr in ((0, ra), (1, rb)):
            p = 2 + 2 * cb + comp
            i("v_cndmask_b32 v%d, 0, v%d, s[8:9]" % (p, rr[0]))
            i("v_cndmask_b32 v%d, v%d, v%d, s[10:11]" % (p, p, rr[1]))
            i("v_cndmask_b32 v%d, v%d, v%d, vcc" % (p, p, rr[2]))
            i("v_mov_b32 v%d, v%d" % (36 + 2 * cb + comp, rr[3]))
    i("v_cmp_gt_u32 vcc, 16, v0")
    i("v_bfrev_b32 v7, 1")
    i("s_nop 0")
    i("v_cndmask_b32 v6, v7, v%d, vcc" % V_L16)
    st.vm("buffer_store_dwordx4 v[36:39], v6, %s, s%d offen sc1" % (sq(S_WS), S_CBO), 'pub')
    st.vm_wait(['gld'])
    for e in range(4): i("v_sub_f32 v%d, 1.0, v%d" % (V_OMG + e, V_GE + e))
    for e in (0, 2):
        i("v_cvt_pk_bf16_f32 v6, v%d, v%d" % (V_OMG + e, V_OMG + e + 1))
        i("v_lshlrev_b32 v%d, 16, v6" % (V_OMG + e)); i("v_and_b32 v%d, 0xffff0000, v6" % (V_OMG + e + 1))
    def gelu_quads(srcs, e_list, dsts):
        l = []
        for k, (u, e) in enumerate(zip(srcs, e_list)):
            t_ = 32 + 2 * k; U = vq(u, 2); T = vq(t_, 2)
            om = vq(V_OMG + (e & 2), 2); sel = "op_sel:[0,%d] op_sel_hi:[1,%d]" % (e & 1, e & 1)
            l.append(["v_pk_mul_f32 %s, %s, %s" % (T, U, U),
                      "v_pk_fma_f32 %s, %s, s[%d:%d], s[%d:%d] op_sel:[0,0,1] op_sel_hi:[1,0,1]" % (T, T, S_GC, S_GC + 1, S_GC, S_GC + 1),
                      "v_pk_mul_f32 %s, %s, %s" % (T, T, U),
                      "v_exp_f32_e64 v%d, v%d" % (t_, t_), "v_exp_f32_e64 v%d, v%d" % (t_ + 1, t_ + 1),
                      "v_pk_mul_f32 %s, %s, %s %s" % (U, U, om, sel),
                      "v_pk_add_f32 %s, %s, 1.0 op_sel_hi:[1,0]" % (T, T),
                      "v_rcp_f32_e64 v%d, v%d" % (t_, t_), "v_rcp_f32_e64 v%d, v%d" % (t_ + 1, t_ + 1),
                      "v_pk_mul_f32 %s, %s, %s" % (T, T, U)])
        for t_ in interleave(*l): i(t_)
        for k, d in enumerate(dsts): i("v_cvt_pk_bf16_f32 v%d, v%d, v%d" % (d, 32 + 2 * k, 33 + 2 * k))
    CAR = [160 + 4 * u for u in range(4)] + [192 + 4 * u for u in range(4)]
    car_ld = ["buffer_load_dwordx4 %s, v40, %s, 0 offen offset:%d sc1" % (vq(CAR[u]), sq(S_MB), u * 512) for u in range(8)]
    i("v_lshrrev_b32 v40, 4, v0"); i("v_and_b32 v41, 15, v0"); i("v_lshlrev_b32 v41, 4, v41")
    i("v_lshl_add_u32 v40, v40, 12, v41")
    i("s_sub_u32 s%d, 32, s%d" % (T0, T2)); i("s_lshl_b32 s%d, s%d, 9" % (T0, T0))
    i("v_add_u32 v40, s%d, v40" % T0)
    i(".p2align 3")
    for q in range(3):
        i("s_add_u32 s%d, s%d, 0x%x" % (O_H, S_HP + 2, q * 4096 + BIG))
        for e in range(4):
            X = acc1(4 + 2 * q, e); Y = acc1(5 + 2 * q, e)
            gelu_quads([X, X + 2, Y, Y + 2], [e] * 4, [X, X + 1, X + 2, X + 3])
            st.vm("buffer_store_dwordx4 %s, v%d, %s, s%d offen offset:%d sc1" % (vq(X), V_L16, sq(S_WS), O_H, e * 1024), 'hF')
        if q == 1:
            for t_ in car_ld: st.vm(t_, 'car')
    i("v_bfe_u32 v6, v0, 4, 1"); i("v_lshrrev_b32 v7, 5, v0"); i("v_lshl_add_u32 v6, v6, 2, v7")
    i("v_lshl_add_u32 v6, v6, 8, v41")
    i("s_lshl_b32 s%d, s%d, 9" % (T0, S_PAR)); i("s_add_u32 s%d, s%d, s%d" % (T0, T0, S_H))
    i("s_add_u32 s%d, s%d, 0x%x" % (O_H, T0, 3 * 4096 + BIG))
    for e0 in (0, 2):
        X = acc1(10, e0)
        gelu_quads([X, X + 2, X + 4, X + 6], [e0, e0, e0 + 1, e0 + 1], [X, X + 1, X + 2, X + 3])
        i("s_nop 1")
        i("v_permlane16_swap_b32 v%d, v%d" % (X, X + 2)); i("v_permlane16_swap_b32 v%d, v%d" % (X + 1, X + 3))
        st.vm("buffer_store_dwordx4 %s, v6, %s, s%d offen offset:%d sc1" % (vq(X), sq(S_WS), O_H, e0 * 1024), 'hF')
    stamp(3)
    st.vm_wait([('F', k) for k in range(7)] + [('C', 0), ('C', 1), 'car'])
    i("s_barrier")
    test = "\n".join(["v_and_b32 v6, v%d, v%d" % (CAR[0], CAR[0])] * 0 +
                     ["v_max3_u32 v6, v%d, v%d, v%d" % (CAR[0], CAR[1], CAR[2]), "v_max3_u32 v7, v%d, v%d, v%d" % (CAR[3], CAR[4], CAR[5]),
                      "v_max3_u32 v6, v6, v%d, v%d" % (CAR[6], CAR[7]), "v_max_u32 v6, v6, v7",
                      "v_cmp_eq_u32 vcc, -1, v6", "s_cmp_eq_u64 vcc, 0"])
    st.item(R(spin("car", "\n".join(car_ld), test)))
    for u in range(6, -1, -1):
        l = [[], []]
        for cb in range(2):
            cfma(l[cb].append, CAR[u] + 2 * cb, CAR[u] + 2 * cb + 1, V_L64 + 2 * cb, V_L64 + 2 * cb + 1, CAR[u + 1] + 2 * cb, CAR[u + 1] + 2 * cb + 1)
        for t_ in interleave(*l): i(t_)
    l = [[], []]
    for cb in range(2):
        cmul(l[cb].append, 32 + 2 * cb, 33 + 2 * cb, V_L512G + 2 * cb, V_L512G + 2 * cb + 1, CAR[0] + 2 * cb, CAR[0] + 2 * cb + 1)
    for t_ in interleave(*l): i(t_)
    for sw in ("v_permlane16_swap_b32", "v_permlane32_swap_b32"):
        for k in range(4): i("v_mov_b32 v%d, v%d" % (36 + k, 32 + k))
        i("s_nop 0")
        for k in range(4): i("%s v%d, v%d" % (sw, 32 + k, 36 + k))
        for k in range(4): i("v_add_f32 v%d, v%d, v%d" % (32 + k, 32 + k, 36 + k))
    QR = [224, 232]; QI = [226, 234]; TA = [228, 236]; TB = [230, 238]; QN = [32, 34]
    l = [[], []]
    for cb in range(2):
        o = l[cb].append
        cfma(o, 2 + 2 * cb, 3 + 2 * cb, V_L16G + 2 * cb, V_L16G + 2 * cb + 1, 32 + 2 * cb, 33 + 2 * cb)
        cmul(o, 36 + 2 * cb, 37 + 2 * cb, V_CO + 2 * cb, V_CO + 2 * cb + 1, 2 + 2 * cb, 3 + 2 * cb)
        cmul(o, QR[cb], QI[cb], V_L1 + 2 * cb, V_L1 + 2 * cb + 1, 36 + 2 * cb, 37 + 2 * cb)
        cmul(o, QR[cb] + 1, QI[cb] + 1, V_L2 + 2 * cb, V_L2 + 2 * cb + 1, 36 + 2 * cb, 37 + 2 * cb)
    for t_ in interleave(*l): i(t_)
    i("v_bfe_u32 v36, v0, 1, 2"); i("v_and_b32 v37, 1, v0"); i("v_lshl_or_b32 v36, v37, 2, v36")
    i("v_lshrrev_b32 v37, 4, v0"); i("v_lshlrev_b32 v37, 1, v37"); i("v_xor_b32 v36, v36, v37")
    i("v_and_b32 v37, 15, v0"); i("v_lshlrev_b32 v37, 7, v37"); i("v_lshl_add_u32 v36, v36, 4, v37")
    i("s_lshl_b32 s%d, s%d, 13" % (T0, S_W)); i("s_add_u32 s%d, s%d, %d" % (T0, T0, T_LDS))
    i("v_add_u32 v6, s%d, v36" % T0); i("v_xor_b32 v7, 16, v6")
    i("v_bfe_u32 v36, v0, 3, 1"); i("v_bfe_u32 v37, v0, 2, 1"); i("v_lshl_or_b32 v36, v37, 2, v36")
    i("v_and_b32 v37, 3, v0"); i("v_lshlrev_b32 v37, 1, v37"); i("v_xor_b32 v36, v36, v37")
    i("v_bfe_u32 v37, v0, 2, 2"); i("v_lshlrev_b32 v37, 7, v37"); i("v_lshl_add_u32 v36, v36, 4, v37")
    i("v_lshrrev_b32 v37, 4, v0"); i("v_lshl_add_u32 v36, v37, 10, v36")
    i("v_add_u32 v40, s%d, v36" % T0); i("v_xor_b32 v41, 16, v40")
    i("v_xor_b32 v78, 32, v40"); i("v_xor_b32 v79, 48, v40")
    i(".p2align 3")
    LO = "op_sel:[0,0,0] op_sel_hi:[1,0,1]"; HI = "op_sel:[0,1,0] op_sel_hi:[1,1,1]"; NG = " neg_lo:[0,1,0] neg_hi:[0,1,0]"
    qr = list(QR); qn = list(QN)
    for p in range(8):
        l = [[], []]
        for cb in range(2):
            o = l[cb].append
            sr, si = vq(RE[cb] + 2 * p, 2), vq(IM[cb] + 2 * p, 2)
            co, l2 = vq(V_CO + 2 * cb, 2), vq(V_L2 + 2 * cb, 2)
            ta, tb, q_r, q_i, q_n = vq(TA[cb], 2), vq(TB[cb], 2), vq(qr[cb], 2), vq(QI[cb], 2), vq(qn[cb], 2)
            gg = vq(V_G + 2 * p, 2)
            o("v_pk_fma_f32 %s, %s, %s, %s %s" % (ta, sr, co, q_r, LO))
            o("v_pk_fma_f32 %s, %s, %s, %s %s" % (tb, si, co, q_i, LO))
            o("v_pk_fma_f32 %s, %s, %s, %s %s" % (ta, si, co, ta, HI + NG))
            o("v_pk_fma_f32 %s, %s, %s, %s %s" % (tb, sr, co, tb, HI))
            if p < 7:
                o("v_pk_mul_f32 %s, %s, %s op_sel:[0,0] op_sel_hi:[1,0]" % (q_n, q_r, l2))
                o("v_pk_fma_f32 %s, %s, %s, %s %s" % (q_n, q_i, l2, q_n, HI + NG))
                o("v_pk_mul_f32 %s, %s, %s op_sel:[0,0] op_sel_hi:[1,0]" % (q_i, q_i, l2))
                o("v_pk_fma_f32 %s, %s, %s, %s %s" % (q_i, q_r, l2, q_i, HI))
            o("v_pk_mul_f32 %s, %s, %s" % (ta, ta, gg))
            o("v_pk_mul_f32 %s, %s, %s neg_lo:[0,1] neg_hi:[0,1]" % (tb, tb, gg))
            o("v_cvt_pk_bf16_f32 v%d, v%d, v%d" % (RE[cb] + p, TA[cb], TA[cb] + 1))
            o("v_cvt_pk_bf16_f32 v%d, v%d, v%d" % (IM[cb] + p, TB[cb], TB[cb] + 1))
            qr[cb], qn[cb] = qn[cb], qr[cb]
        for t_ in interleave(*l): i(t_)
        if p in (3, 7):
            hh = p // 4
            for part, RR in enumerate((RE, IM)):
                for cb in range(2):
                    st.ds("ds_write_b128 v%d, %s offset:%d" % (6 + hh, vq(RR[cb] + 4 * hh), part * 4096 + cb * 2048))
    for part in range(2):
        for e in range(4):
            for h in range(2):
                rb_ = ((40, 41), (78, 79))[h][e >> 1]
                st.ds("ds_read_b64_tr_b16 %s, v%d offset:%d" % (aq((A_SRE, A_SIM)[part] + 4 * e + 2 * h, 2), rb_, part * 4096 + h * 512 + (e & 1) * 8), ('T', part, e))
    i("v_lshrrev_b32 v6, 4, v0"); i("v_bfe_u32 v7, v0, 2, 2")
    i("v_and_b32 v2, 1, v6"); i("v_lshl_or_b32 v2, v2, 2, v7"); i("v_lshlrev_b32 v2, 5, v2")
    i("v_lshl_add_u32 v2, v7, 8, v2"); i("v_lshl_add_u32 v2, v6, 10, v2")
    i("v_and_b32 v7, 3, v0"); i("v_lshl_add_u32 v2, v7, 3, v2")
    i("v_add_u32 v%d, %d, v2" % (V_RF, F_LDS))
    for lam in range(1, 8): i("v_xor_b32 v%d, %d, v%d" % (V_RF + lam, lam * 32, V_RF))
    for part in range(2):
        i("s_add_u32 s%d, s%d, 0x%x" % (O_H, S_HP + 3, part * 8192 + BIG))
        for e in range(4):
            st.need([('T', part, e)])
            st.vm("buffer_store_dwordx4 %s, v%d, %s, s%d offen offset:%d sc1" % (aq((A_SRE, A_SIM)[part] + 4 * e), V_L16, sq(S_WS), O_H, e * 1024), 'hS')
    i("v_and_b32 v7, 15, v0"); i("v_lshrrev_b32 v2, 1, v7"); i("v_xor_b32 v2, v2, v6"); i("v_lshlrev_b32 v2, 4, v2")
    i("v_lshl_add_u32 v%d, v7, 7, v2" % V_RC); i("v_xor_b32 v%d, 64, v%d" % (V_RC + 1, V_RC))
    i("s_lshl_b32 s%d, s%d, 6" % (T0, S_PAR))
    i("v_xor_b32 v2, s%d, v%d" % (T0, V_RC)); i("v_xor_b32 v3, 64, v2")
    S_FL = 100
    i("s_lshl_b32 s%d, s%d, 14" % (T0, S_J)); i("s_sub_u32 s%d, s%d, s%d" % (S_FL, S_CBO, T0)); i("s_add_u32 s%d, s%d, 384" % (S_FL, S_FL))
    i("v_cmp_eq_u32 vcc, s%d, v0" % S_J); i("v_bfrev_b32 v7, 1"); i("v_lshlrev_b32 v5, 2, v0")
    i("v_cndmask_b32 v4, v7, v5, vcc"); i("v_and_b32 v5, 28, v5"); i("v_mov_b32 v6, 0")

    NU = 22
    def hreg(n, e):
        h = seq[n]['h']
        if h[0] == 'v': return vq(h[1] + 4 * e)
        if h[0] == 'a': return aq(h[1] + 4 * e)
        return aq(A_H + ((n // 2) % 3) * 32 + (n % 2) * 16 + 4 * e)
    def w2_reads(G):
        u, lam = divmod(G, 8); out = []
        for k in range(2):
            s_ = seq[2 * u + k]; r = wf(G, k); t_ = s_['tile']
            if s_['t'] == 'F':
                for h in range(2):
                    out.append(('ds', "ds_read_b64_tr_b16 %s, v%d offset:%d" % (aq(r + 2 * h, 2), V_RF + lam, FSLOT[t_['idx'] % 8] * 8192 + h * 4096), ('w2', G)))
            else:
                out.append(('ds', "ds_read_b128 %s, v%d offset:%d" % (aq(r), s_['rb'], t_['slot'] * 16384 + lam * 2048), ('w2', G)))
        return out
    def h_items(n):
        h = seq[n]['h']
        if h[0] != 'ld': return []
        out = [R("s_add_u32 s%d, s%d, 0x%x" % (O_H, h[1], h[2] + BIG))]
        for e in range(4):
            out.append(('vm', "buffer_load_dwordx4 %s, v%d, %s, s%d offen offset:%d sc1" % (hreg(n, e), V_L16, sq(S_WS), O_H, e * 1024), ('H', n)))
        return out
    BAR2 = 8 - D2
    g2 = Gaps(NU * 64)
    for G in range(NU * 8): g2.g[G * 8 + 7].append(('resv',))
    for G in range(D2, NU * 8): g2.place(w2_reads(G), (G - D2) * 8, (G - D2) * 8 + 7)
    units = []
    for t_ in ftiles[7:]:
        prev = ftiles[t_['idx'] - 8] if t_['idx'] >= 8 else None
        units.append(dict(t=t_, half=None, lo=(prev['last'] + 2 if prev else 0), dl=t_['first'] - 2))
    for t_ in ctiles[2:]:
        prev = ctiles[t_['idx'] - 4] if t_['idx'] >= 4 else None
        for h in range(2): units.append(dict(t=t_, half=h, lo=(prev['last'] + 2 if prev else 1), dl=t_['first'] - 2))
    win = [[] for _ in range(NU)]
    for v in range(NU):
        av = sorted([x for x in units if x['lo'] <= v and 'w' not in x], key=lambda x: x['dl'])
        for x in av:
            if len(win[v]) < 2 or x['dl'] <= v:
                x['w'] = v; win[v].append(x)
    assert all('w' in x and x['w'] <= x['dl'] for x in units), [(x['t'], x['lo'], x['dl'], x.get('w')) for x in units if x.get('w', 99) > x['dl']]
    fl_ld = lambda off: "buffer_load_dword v7, v5, %s, s%d offen offset:%d sc1" % (sq(S_WS), S_FL, off)
    fl_test = "v_cmp_ne_u32 vcc, 0, v7\ns_cmp_eq_u64 vcc, 0"
    for v in range(NU):
        lo = max((v - 1) * 64 + BAR2 * 8, 0); hi = v * 64 + BAR2 * 8
        dl = sum([unit_items(x['t'], x['half']) for x in win[v]], [])
        if dl: g2.place(dl, lo, min(lo + 30, hi))
        hl = []
        if v == 0:
            g2.place([('vm', fl_ld(0), 'flF')], 44, 48)
        elif v == 1:
            hl = [('needvm', ['flF', 'hS']), R(spin("flF", fl_ld(0), fl_test)),
                  ('vm', "buffer_store_dword v6, v4, %s, s%d offen offset:32 sc1" % (sq(S_WS), S_FL), 'setS')] + h_items(5) + h_items(6) + h_items(7)
            g2.place(hl, 64 + 6, 64 + 50)
        else:
            if v == 4: hl.append(('vm', fl_ld(32), 'flS'))
            if v == 6: hl += [('needvm', ['flS']), R(spin("flS", fl_ld(32), fl_test))]
            if v + 2 < NU: hl += h_items(2 * v + 4) + h_items(2 * v + 5)
            if hl: g2.place(hl, v * 64, v * 64 + BAR2 * 8)
    bg = [R("v_and_b32 v8, 12, v0"), R("v_and_b32 v9, 3, v0"), R("v_lshl_add_u32 v8, v8, 2, v9"),
          R("s_lshl2_add_u32 s%d, s%d, s%d\ns_lshl_b32 s%d, s%d, 6" % (T0, S_J, S_B, T0, T0)),
          R("v_lshrrev_b32 v9, 4, v0"), R("v_lshl_add_u32 v9, v9, 3, s%d" % T0),
          R("s_lshl_b32 s%d, s%d, 17" % (T1, T2)), R("v_lshl_add_u32 v8, v8, 11, v9"), R("v_add_u32 v8, s%d, v8" % T1)]
    for e in range(4):
        bg.append(R("s_mov_b32 s%d, 0x%x" % (T0, e * 8192)))
        for lam in range(2):
            bg.append(('vm', "buffer_load_dwordx2 %s, v8, %s, s%d offen offset:%d" % (vq(144 + 4 * e + 2 * lam, 2), sq(S_X), T0, lam * 32), 'tx'))
    for k, p in enumerate((P_DSK, P_B2)):
        for lam in range(2):
            bg.append(('vm', "global_load_dwordx2 %s, v9, s[%d:%d] offset:%d" % (vq(176 + 4 * k + 2 * lam, 2), p, p + 1, lam * 32), 'tx'))
    bg.append(R("v_lshlrev_b32 v8, 1, v8"))
    g2.place(bg, 20 * 64, 21 * 64 + 20)

    for G in range(D2):
        for it in w2_reads(G): st.item(it)
    st.vm_wait(['hF'])
    st.vm("buffer_store_dword v6, v4, %s, s%d offen sc1" % (sq(S_WS), S_FL), 'setF')
    stamp(4)
    i(".p2align 3")
    t = 0
    for G in range(NU * 8):
        u, lam = divmod(G, 8)
        if lam == BAR2 and u + 1 < NU:
            tags = []
            for k in (2 * u + 2, 2 * u + 3):
                tags.append((seq[k]['tile']['kind'], seq[k]['tile']['idx']))
                if seq[k]['h'][0] == 'ld' and u >= 2: tags.append(('H', k))
            if u == 5: tags.append('flS')
            st.vm_wait(tags)
            i("s_barrier")
        if lam == 0: st.vm_wait([('H', k) for k in (2 * u, 2 * u + 1) if seq[k]['h'][0] == 'ld'])
        n = 0
        for e0 in range(4):
            e = e0 if lam % 2 == 0 else 3 - e0
            for k0 in range(2):
                k = k0 ^ t
                st.need([('w2', G)])
                d = vq(acc2(lam, e))
                i("v_mfma_f32_16x16x32_bf16 %s, %s, %s, %s" % (d, aq(wf(G, k)), hreg(2 * u + k, e), "0" if (u == 0 and k0 == 0) else d))
                g2.emit(st, G * 8 + n); n += 1
            t ^= 1
    stamp(5)

    for dl_ in range(1, 4):
        i("s_add_u32 s%d, s%d, %d" % (T0, S_B, dl_)); i("s_and_b32 s%d, s%d, 3" % (T0, T0))
        i("s_sub_u32 s%d, s%d, s%d" % (T1, T0, S_B)); i("s_lshl_b32 s%d, s%d, 17" % (T1, T1))
        i("s_add_u32 s%d, s%d, s%d" % (S_WT + dl_, S_CBO, T1))
        i("s_lshl3_add_u32 s%d, s%d, s%d" % (T0, T0, S_J)); i("s_lshl_b32 s%d, s%d, 5" % (T0, T0)); i("s_add_u32 s%d, s%d, s%d" % (T0, T0, T2))
        i("s_mul_i32 s%d, s%d, 12288" % (T0, T0)); i("s_add_u32 s%d, s%d, 0x%x" % (O_H, T0, P_OFF + (dl_ - 1) * 4096))
        for e in range(4):
            X, Y = acc2(2 * dl_, e), acc2(2 * dl_ + 1, e)
            i("v_cvt_pk_bf16_f32 v%d, v%d, v%d" % (X, X, X + 1)); i("v_cvt_pk_bf16_f32 v%d, v%d, v%d" % (X + 1, X + 2, X + 3))
            i("v_cvt_pk_bf16_f32 v%d, v%d, v%d" % (X + 2, Y, Y + 1)); i("v_cvt_pk_bf16_f32 v%d, v%d, v%d" % (X + 3, Y + 2, Y + 3))
            st.vm("buffer_store_dwordx4 %s, v%d, %s, s%d offen offset:%d sc1" % (vq(X), V_L16, sq(S_WS), O_H, e * 1024), ('P', dl_))
    i("v_cmp_eq_u32 vcc, 0, v0"); i("v_bfrev_b32 v7, 1"); i("s_mov_b32 s%d, 0xffff0000" % T0)
    i("v_cndmask_b32 v4, v7, v0, vcc")
    st.vm_wait(['tx'])
    for k in range(2):
        for lam in range(2):
            src = 176 + 4 * k + 2 * lam; dst = 208 + 8 * k + 4 * lam
            for h in range(2):
                i("v_lshlrev_b32 v%d, 16, v%d" % (dst + 2 * h, src + h)); i("v_and_b32 v%d, s%d, v%d" % (dst + 2 * h + 1, T0, src + h))
    def setflag(dl_):
        st.vm_wait([('P', dl_)])
        st.vm("buffer_store_dword v6, v4, %s, s%d offen offset:%d sc1" % (sq(S_WS), S_WT + dl_, 256 + 4 * (dl_ - 1)), ('PF', dl_))
    for e in range(4):
        sel = "op_sel:[0,%d,0] op_sel_hi:[1,%d,1]" % (e & 1, e & 1)
        for lam in range(2):
            src = 144 + 4 * e + 2 * lam; A = acc2(lam, e)
            for h in range(2):
                t_ = 184 + 2 * h
                i("v_lshlrev_b32 v%d, 16, v%d" % (t_, src + h)); i("v_and_b32 v%d, s%d, v%d" % (t_ + 1, T0, src + h))
            for h in range(2): i("v_pk_mul_f32 %s, %s, %s" % (vq(184 + 2 * h, 2), vq(184 + 2 * h, 2), vq(208 + 4 * lam + 2 * h, 2)))
            if mimic:
                for h in range(2): i("v_cvt_pk_bf16_f32 v%d, v%d, v%d" % (188 + h, 184 + 2 * h, 185 + 2 * h))
                for h in range(2):
                    i("v_lshlrev_b32 v%d, 16, v%d" % (184 + 2 * h, 188 + h)); i("v_and_b32 v%d, s%d, v%d" % (185 + 2 * h, T0, 188 + h))
            for h in range(2):
                i("v_pk_fma_f32 %s, %s, %s, %s %s" % (vq(A + 2 * h, 2), vq(184 + 2 * h, 2), vq(V_GE + (e & 2), 2), vq(A + 2 * h, 2), sel))
                i("v_pk_fma_f32 %s, %s, %s, %s %s" % (vq(A + 2 * h, 2), vq(216 + 4 * lam + 2 * h, 2), vq(V_OMG + (e & 2), 2), vq(A + 2 * h, 2), sel))
    i("v_bfe_u32 v16, v0, 2, 2"); i("v_lshrrev_b32 v17, 4, v0"); i("v_cmp_eq_u32 vcc, v16, v17")
    i("v_and_b32 v16, 1, v0"); i("v_lshlrev_b32 v16, 4, v16"); i("v_mov_b32 v17, 0x3f80"); i("v_lshlrev_b32 v16, v16, v17")
    i("v_cndmask_b32 v16, 0, v16, vcc"); i("v_and_b32 v17, 2, v0"); i("v_cmp_eq_u32 vcc, 0, v17")
    for r in (10, 11, 14, 15): i("v_mov_b32 v%d, 0" % r)
    i("v_cndmask_b32 v12, 0, v16, vcc"); i("v_sub_u32 v13, v16, v12")
    for dl_ in range(1, 4): setflag(dl_)
    i("s_lshl_b32 s%d, s%d, 5" % (T0, S_NI)); i("s_add_u32 s%d, s%d, s%d" % (T0, T0, T2))
    i("s_mul_i32 s%d, s%d, 12288" % (T0, T0)); i("s_add_u32 s%d, s%d, 0x%x" % (O_H, T0, P_OFF))
    a.label("L_pollP")
    i("buffer_load_dwordx3 v[16:18], off, %s, s%d offset:256 sc1" % (sq(S_WS), S_CBO))
    i("s_cmp_eq_u32 s%d, 0" % S_SPIN)
    i("s_cbranch_scc1 L_gotP")
    i("s_sub_u32 s%d, s%d, 1" % (S_SPIN, S_SPIN))
    i("s_waitcnt vmcnt(0)")
    i("v_or3_b32 v16, v16, v17, v18")
    i("v_cmp_ne_u32 vcc, 0, v16")
    i("s_cbranch_vccnz L_pollP")
    a.label("L_gotP")
    i("s_waitcnt vmcnt(0)")
    st.vm_done = st.vm_issued
    stamp(6)
    for dl_ in range(3):
        for e in range(4):
            st.vm("buffer_load_dwordx4 %s, v%d, %s, s%d offen offset:%d sc1" % (aq(16 * dl_ + 4 * e), V_L16, sq(S_WS), O_H, e * 1024), ('R', dl_, e))
        if dl_ < 2: i("s_add_u32 s%d, s%d, 4096" % (O_H, O_H))
    for dl_ in range(3):
        for e in range(4):
            st.vm_wait([('R', dl_, e)])
            for lam in range(2):
                d = vq(acc2(lam, e))
                i("v_mfma_f32_16x16x32_bf16 %s, %s, %s, %s" % (d, vq(12 - 2 * lam), aq(16 * dl_ + 4 * e), d))
    i("s_mov_b32 s%d, 0" % T0); i("s_nop 0")
    for e in range(4):
        if e == 3: i("s_nop 1")
        for lam in range(2):
            st.vm("buffer_store_dwordx4 %s, v8, %s, s%d offen offset:%d %s" % (vq(acc2(lam, e)), sq(S_OUT), T0, lam * 64, outaux))
        if e < 3: i("s_add_u32 s%d, s%d, 16384" % (T0, T0))
    if stamps:
        i("s_waitcnt vmcnt(0)")
        stamp(7)
        i("s_mov_b32 s%d, 0x10000000" % (S_WS + 2))
        i("s_lshl_b32 s%d, s2, 7" % T0); i("s_add_u32 s%d, s%d, 0x%x" % (T0, T0, STAMP_OFF))
        i("v_or_b32 v5, s%d, v0" % S_W); i("v_cmp_eq_u32 vcc, 0, v5"); i("v_bfrev_b32 v7, 1"); i("s_nop 0"); i("v_cndmask_b32 v5, v7, v5, vcc")
        for n in range(8): i("buffer_store_dwordx4 %s, v5, %s, s%d offen offset:%d" % (aq(224 + 4 * n), sq(S_WS), T0, 16 * n))
    a.label("L_end")
    i("s_endpgm")
    for name, load, test in slow:
        a.label("L_slow_%s" % name)
        i("s_cmp_eq_u32 s%d, 0" % S_SPIN)
        i("s_cbranch_scc1 L_back_%s" % name)
        i("s_sub_u32 s%d, s%d, 1" % (S_SPIN, S_SPIN))
        for t_ in load.split("\n"): i(t_)
        i("s_waitcnt vmcnt(0)")
        for t_ in test.split("\n"): i(t_)
        i("s_cbranch_scc0 L_slow_%s" % name)
        i("s_branch L_back_%s" % name)
    a.label("L_pad")
    i(".fill (66048 - (L_pad - %s)) / 4, 4, 0xbf810000" % KN)
    a(rodata([descriptor(KN, 512, 102, 256)]))
    return a.text()

if __name__ == "__main__":
    open("k.s", "w").write(gen())
    open("k_st.s", "w").write(gen(stamps=True))
```

```python
import sys, struct
from asmlib import *

KN = NAME + "_kernel"

H_OFF = 0
P_OFF = 0x2000000
CB_OFF = 0x3000000
G_OFF = 0x3100000
WS_USED = 0x3200000
X_LDS, B_LDS, W_LDS = 0, 65536, 90112
C_LDS, F_LDS = 0, 98304
T_LDS = 32768
S_WS = 4
S_MI, S_NI, S_J, S_B, S_W, S_PAR = 12, 13, 14, 15, 16, 17
T0, T1, T2 = 18, 19, 3
S_X, S_BS, S_W1, S_W2, S_CRE, S_CIM, S_OUT, S_DBG, S_MB = 20, 24, 28, 32, 36, 40, 44, 48, 52
P_LRE, P_LIM, P_LDT, P_DSK, P_B1, P_B2, P_GW = 56, 58, 60, 62, 64, 66, 68
M_X, M_B, M_W, M_F, M_C = 70, 71, 72, 73, 74
O_K, O_W = 75, 76
S_H = 77
S_HP = 81
S_WT = 85
S_CT = 89
S_WOWN, S_WPAR = 93, 94
O_H = 95
S_SPIN = 96
S_CBO = 97
S_GC = 98
S_ST = 8
BIG = 0x100000

ACC0 = 80
def acc1(nb, e): return ACC0 + (nb * 4 + e) * 4
ACC2 = [80, 96, 112, 128, 160, 192, 224, 240]
def acc2(lam, e): return ACC2[lam] + 4 * e
def ownF(q, e): return 144 + 32 * q + 4 * e
def vq(r, n=4): return "v[%d:%d]" % (r, r + n - 1)
def aq(r, n=4): return "a[%d:%d]" % (r, r + n - 1)
def sq(r, n=4): return "s[%d:%d]" % (r, r + n - 1)
def fl(x): return "0x%08x" % struct.unpack("<I", struct.pack("<f", x))[0]

V_LANE, V_L16 = 0, 1
V_RX, V_RB, V_RW = 2, 4, 6
V_DX, V_DB, V_DW = 8, 16, 18
V_G = 8
V_DF, V_DS, V_DC = 24, 26, 28
V_RF, V_RC = 32, 40
V_OMG, V_GE = 42, 46
V_L1, V_L2, V_L16P, V_L64, V_L512G, V_L16G, V_CO = 50, 54, 58, 62, 66, 70, 74
XF0, WF0, NP = 0, 64, 4
A_SRE, A_SIM, A_H = 96, 112, 128

class Stream:
    def __init__(self, a):
        self.a = a
        self.ds_issued = 0; self.ds_done = 0; self.frag_last = {}
        self.vm_issued = 0; self.vm_done = 0; self.vm_tag = {}
    def i(self, t): self.a.i(t)
    def ds(self, text, frag=None):
        self.a.i(text); self.ds_issued += 1
        if frag is not None: self.frag_last[frag] = self.ds_issued
    def need(self, frags):
        idx = max(self.frag_last[f] for f in frags)
        if idx > self.ds_done:
            n = min(self.ds_issued - idx, 15)
            self.a.i("s_waitcnt lgkmcnt(%d)" % n)
            self.ds_done = self.ds_issued - n
    def ds_all(self):
        if self.ds_done < self.ds_issued:
            self.a.i("s_waitcnt lgkmcnt(0)"); self.ds_done = self.ds_issued
    def vm(self, text, tag=None):
        self.a.i(text); self.vm_issued += 1
        if tag is not None: self.vm_tag[tag] = self.vm_issued
    def vm_wait(self, tags, extra="", force=False):
        idx = max([self.vm_tag[t] for t in tags] + [0])
        if idx > self.vm_done:
            n = min(self.vm_issued - idx, 63)
            self.a.i("s_waitcnt vmcnt(%d)%s" % (n, extra))
            self.vm_done = self.vm_issued - n
        elif extra:
            self.a.i("s_waitcnt%s" % extra)
    def item(self, it):
        k = it[0]
        if k == 'raw':
            for t in it[1].split("\n"):
                if t.endswith(":"): self.a.label(t[:-1])
                else: self.a.i(t)
        elif k == 'vm': self.vm(it[1], it[2])
        elif k == 'ds': self.ds(it[1], it[2])
        elif k == 'needvm': self.vm_wait(it[1])
        elif k == 'resv': pass
        else: raise ValueError(k)

class Gaps:
    def __init__(self, n):
        self.g = [[] for _ in range(n)]
    def place(self, items, lo, hi, maxfill=1):
        n = len(items); pos = lo
        for k, it in enumerate(items):
            a0 = max(pos, lo + (k * (hi - lo)) // n)
            a1 = max(a0 + 1, min(hi, lo + ((k + 1) * (hi - lo)) // n + 1))
            a0 = min(a0, hi - 1); a1 = min(a1, hi)
            best = min(range(a0, a1), key=lambda p: (len(self.g[p]), p))
            self.g[best].append(it)
            pos = best + 1 if (hi - best - 1) >= (n - k - 1) else best
    def emit(self, st, p):
        prev_m0 = False
        for it in self.g[p]:
            if prev_m0 and it[0] == 'vm': st.i("s_nop 0")
            st.item(it)
            if it[0] != 'resv': prev_m0 = it[0] == 'raw' and " m0," in it[1]

def R(t): return ('raw', t)

def p1_dma(kind, s):
    out = []
    if kind == 'x':
        for q in range(8):
            if q % 4 == 0: out.append(R("s_add_u32 m0, s%d, 0x%x" % (M_X, (s % 2) * 32768 + (q // 4) * 4096 + BIG)))
            out.append(('vm', "buffer_load_dwordx4 v%d, %s, s%d offen offset:%d lds" % (V_DX + q, sq(S_X), O_K, (q % 4) * 1024), ('x', s)))
    elif kind == 'b':
        out.append(R("s_add_u32 m0, s%d, 0x%x" % (M_B, (s % 3) * 8192 + BIG)))
        for q in range(2):
            out.append(('vm', "buffer_load_dwordx4 v%d, %s, s%d offen offset:%d lds" % (V_DB + q, sq(S_BS), O_K, q * 1024), ('b', s)))
    else:
        out.append(R("s_add_u32 m0, s%d, 0x%x" % (M_W, (s % 3) * 16384 + BIG)))
        for q in range(4):
            out.append(('vm', "buffer_load_dwordx4 v%d, %s, s%d offen offset:%d lds" % (V_DW + q, sq(S_W1), O_W, q * 1024), ('w', s)))
    return out
def p1_stage(s, order="wbx"):
    out = [R("s_mov_b32 s%d, 0x%x" % (O_K, s * 128)), R("s_mov_b32 s%d, 0x%x" % (O_W, s * 64 * 7168))]
    for k in order: out += p1_dma(k, s)
    return out
def p1_tags(s): return [('x', s), ('b', s), ('w', s)]

FSLOT = [5, 6, 7, 1, 2, 3, 4, 0]
def p2_seq():
    seq = []; ft = []; ct = []
    def F(wbase, wconst, shared, h):
        ft.append(dict(kind='F', idx=len(ft), sreg=wbase, const=wconst, shared=shared))
        seq.append(dict(t='F', tile=ft[-1], h=h))
    def C(srd, seg, slot):
        ct.append(dict(kind='C', idx=len(ct), srd=srd, sreg=S_CT + seg, slot=slot)); return ct[-1]
    def S(tile, rb, h): seq.append(dict(t='S', tile=tile, rb=rb, h=h))
    KB = 32 * 2048
    for q in range(3): F(S_WOWN, q * KB, False, ('v', ownF(q, 0)))
    cre0 = C(S_CRE, 0, 0); cim0 = C(S_CIM, 0, 1)
    S(cre0, 2, ('a', A_SRE)); S(cim0, 2, ('a', A_SIM))
    for q in range(3): F(S_WPAR, q * KB, False, ('ld', S_HP, q * 4096))
    F(S_WT, 3 * KB, True, ('ld', S_H, 3 * 4096))
    for sg in range(1, 4):
        for k in range(7): F(S_WT + sg, k * KB, k == 3, ('ld', S_H + sg, k * 4096))
        if sg == 1:
            S(cre0, 3, ('ld', S_HP + 1, 0)); S(cim0, 3, ('ld', S_HP + 1, 2 * 4096))
        sl = 2 * (sg % 2)
        cre = C(S_CRE, sg, sl); cim = C(S_CIM, sg, sl + 1)
        for k in range(2): S(cre, V_RC + k, ('ld', S_H + sg, (7 + k) * 4096))
        for k in range(2): S(cim, V_RC + k, ('ld', S_H + sg, (9 + k) * 4096))
    assert len(seq) == 44
    for n, k in enumerate(seq):
        t = k['tile']; t.setdefault('first', n // 2); t['last'] = n // 2
    return seq, ft, ct
def unit_items(t, half=None):
    if t['kind'] == 'F':
        v = V_DS if t['shared'] else V_DF
        out = [R("s_add_u32 s%d, s%d, 0x%x" % (O_W, t['sreg'], t['const'] + BIG)),
               R("s_add_u32 m0, s%d, 0x%x" % (M_F, FSLOT[t['idx'] % 8] * 8192 + BIG))]
        for q in range(2):
            out.append(('vm', "buffer_load_dwordx4 v%d, %s, s%d offen offset:%d lds" % (v + q, sq(S_W2), O_W, q * 1024), ('F', t['idx'])))
        return out
    out = [R("s_add_u32 m0, s%d, 0x%x" % (M_C, t['slot'] * 16384 + BIG))]
    for q in (2 * half, 2 * half + 1):
        out.append(('vm', "buffer_load_dwordx4 v%d, %s, s%d offen offset:%d lds" % (V_DC + q, sq(t['srd']), t['sreg'], q * 1024), ('C', t['idx'])))
    return out

def cmul(o, dr, di, ar, ai, br, bi):
    o("v_mul_f32 v%d, v%d, v%d" % (dr, ar, br))
    o("v_mul_f32 v%d, v%d, v%d" % (di, ar, bi))
    o("v_fma_f32 v%d, -v%d, v%d, v%d" % (dr, ai, bi, dr))
    o("v_fmac_f32 v%d, v%d, v%d" % (di, ai, br))
def cfma(o, dr, di, ar, ai, br, bi):
    o("v_fmac_f32 v%d, v%d, v%d" % (dr, ar, br))
    o("v_fmac_f32 v%d, v%d, v%d" % (di, ar, bi))
    o("v_fma_f32 v%d, -v%d, v%d, v%d" % (dr, ai, bi, dr))
    o("v_fmac_f32 v%d, v%d, v%d" % (di, ai, br))
def interleave(*lists):
    out = []
    for k in range(max(map(len, lists))):
        for l in lists:
            if k < len(l): out.append(l[k])
    return out

def gen(stamps=False, mimic=True, outaux="", D1=3, BAR1=9, D2=3, spinmax=1 << 16, dbgstop=None):
    a = Asm()
    a(open("cdna_kernels/%s.s.ref" % NAME).read().split("; Override launch")[0].rstrip("\n"))
    a("; @launch grid=(256,1,1) block=(256,1,1) lds=163840")
    a('.amdgcn_target "amdgcn-amd-amdhsa--gfx950"')
    a(".text")
    a(kernel_begin(KN).rstrip("\n"))
    st = Stream(a); i = a.i
    slow = []
    nstamp = [0]
    def stamp(n):
        if stamps:
            i("s_memrealtime s[8:9]"); i("s_memtime s[10:11]"); i("s_waitcnt lgkmcnt(0)")
            st.ds_done = st.ds_issued
            for q in range(4): i("v_accvgpr_write_b32 a%d, s%d" % (224 + 4 * n + q, 8 + q))
    def spin(name, load, test):
        slow.append((name, load, test))
        return test + "\ns_cbranch_scc0 L_slow_%s\nL_back_%s:" % (name, name)

    i("s_cmp_ge_u32 s2, 256")
    i("s_cbranch_scc1 L_end")
    if stamps:
        i("s_memrealtime s[92:93]"); i("s_memtime s[94:95]")
    i("s_load_dwordx2 s[%d:%d], s[0:1], %d" % (S_X, S_X + 1, K_X * 8))
    i("s_load_dwordx4 s[8:11], s[0:1], %d" % (K_BRE * 8))
    i("s_load_dwordx2 s[%d:%d], s[0:1], %d" % (S_W1, S_W1 + 1, K_W1 * 8))
    i("s_load_dwordx2 s[%d:%d], s[0:1], %d" % (P_B1, P_B1 + 1, K_B1 * 8))
    i("s_load_dwordx2 s[%d:%d], s[0:1], %d" % (S_WS, S_WS + 1, K_WS * 8))
    i("s_load_dwordx4 s[%d:%d], s[0:1], %d" % (P_LRE, P_LRE + 3, K_LRE * 8))
    i("s_load_dwordx4 s[%d:%d], s[0:1], %d" % (P_LDT, P_LDT + 3, K_LOGDT * 8))
    i("s_getpc_b64 s[%d:%d]" % (S_HP + 1, S_HP + 2))
    i("s_lshr_b32 s%d, s2, 3" % T0)
    i("s_lshl_b32 s%d, s%d, 11" % (T0, T0))
    i("v_and_b32 v1, 15, v0")
    i("v_lshl_add_u32 v1, v1, 7, s%d" % T0)
    st.vm("global_load_dword v79, v1, s[%d:%d]" % (S_HP + 1, S_HP + 2))
    i("s_and_b32 s%d, s2, 4" % S_MI)
    i("s_lshr_b32 s%d, s2, 6" % T0)
    i("s_add_u32 s%d, s%d, s%d" % (S_MI, S_MI, T0))
    i("s_and_b32 s%d, s2, 3" % S_B)
    i("s_bfe_u32 s%d, s2, 0x30003" % S_J)
    i("s_lshl3_add_u32 s%d, s%d, s%d" % (S_NI, S_B, S_J))
    i("s_and_b32 s%d, s%d, 1" % (S_PAR, S_J))
    i("v_lshrrev_b32 v1, 6, v0")
    i("v_and_b32 v0, 63, v0")
    i("v_readfirstlane_b32 s%d, v1" % S_W)
    i("v_and_b32 v30, 15, v0")
    i("v_lshrrev_b32 v31, 4, v0")
    i("v_lshrrev_b32 v32, 5, v0")
    i("v_bfe_u32 v33, v0, 3, 2")
    i("v_lshl_add_u32 v32, v32, 4, v33")
    i("v_and_b32 v33, 7, v0")
    i("v_xor_b32 v33, v33, v31")
    i("v_lshlrev_b32 v33, 4, v33")
    i("v_lshl_add_u32 v7, v32, 11, v33")
    i("s_lshl2_add_u32 s%d, s%d, s%d" % (T2, S_MI, S_W))
    i("s_lshl_b32 s%d, s%d, 17" % (T0, T2))
    i("v_add_u32 v7, s%d, v7" % T0)
    i("v_xor_b32 v1, 64, v7")
    for q in range(8):
        off = (32 * (q & 1) + 4 * (q >> 1)) * 2048 - (q % 4) * 1024
        i("v_add_u32 v%d, %d, v%d" % (V_DX + q, off, 1 if q & 1 else 7))
    i("v_lshrrev_b32 v32, 3, v0")
    i("v_lshl_add_u32 v35, v32, 11, v33")
    i("s_and_b32 s%d, s%d, 1" % (T0, S_W))
    i("s_lshl1_add_u32 s%d, s%d, s%d" % (T0, S_NI, T0))
    i("s_lshl_b32 s%d, s%d, 15" % (T0, T0))
    i("v_add_u32 v%d, s%d, v35" % (V_DB, T0))
    i("v_xor_b32 v%d, 64, v%d" % (V_DB + 1, V_DB))
    i("v_add_u32 v%d, %d, v%d" % (V_DB + 1, 8 * 2048 - 1024, V_DB + 1))
    i("s_mul_i32 s%d, s%d, %d" % (T0, S_W, 16 * 7168))
    i("s_mul_i32 s%d, s%d, 224" % (T1, S_NI))
    i("s_add_u32 s%d, s%d, s%d" % (T0, T0, T1))
    i("s_lshl_b32 s%d, s%d, 1" % (T1, S_PAR))
    i("v_bfrev_b32 v34, 1")
    for par in range(2):
        i("v_subrev_u32 v32, %d, v0" % (8 * par))
        i("v_cmp_gt_u32 vcc, 56, v32")
        i("v_mul_u32_u24 v33, 4682, v32")
        i("v_lshrrev_b32 v33, 16, v33")
        i("v_mul_u32_u24 v1, 14, v33")
        i("v_sub_u32 v32, v32, v1")
        i("v_add_u32 v32, s%d, v32" % T1)
        i("v_subrev_u32 v1, 14, v32")
        i("v_min_u32 v32, v32, v1")
        i("v_mul_u32_u24 v33, 7168, v33")
        i("v_lshl_add_u32 v32, v32, 4, v33")
        i("v_add_u32 v32, s%d, v32" % T0)
        for q in (2 * par, 2 * par + 1):
            i("v_add_u32 v33, %d, v32" % (q * (4 * 7168 - 1024)))
            i("v_cndmask_b32 v%d, v34, v33, vcc" % (V_DW + q))
    i("s_lshl_b32 s%d, s%d, 13" % (M_X, S_W))
    i("s_sub_u32 s%d, s%d, 0x%x" % (M_X, M_X, BIG))
    i("s_lshl_b32 s%d, s%d, 11" % (M_B, S_W))
    i("s_add_u32 s%d, s%d, 0x%x" % (M_F, M_B, (F_LDS - BIG) & 0xffffffff))
    i("s_add_u32 s%d, s%d, 0x%x" % (M_B, M_B, (B_LDS - BIG) & 0xffffffff))
    i("s_lshl_b32 s%d, s%d, 12" % (M_W, S_W))
    i("s_add_u32 s%d, s%d, 0x%x" % (M_C, M_W, (C_LDS - BIG) & 0xffffffff))
    i("s_add_u32 s%d, s%d, 0x%x" % (M_W, M_W, (W_LDS - BIG) & 0xffffffff))
    for r, nb in ((S_X, 2048 * 2048), (S_BS, 1024 * 2048), (S_W1, 1024 * 7168)):
        i("s_mov_b32 s%d, 0x%x" % (r + 2, nb)); i("s_mov_b32 s%d, 0x20000" % (r + 3))
    i("s_cmp_lt_u32 s%d, 2" % S_W)
    i("s_waitcnt lgkmcnt(0)")
    i("s_cselect_b32 s%d, s8, s10" % S_BS)
    i("s_cselect_b32 s%d, s9, s11" % (S_BS + 1))
    def emit_seq(items):
        for it in items:
            st.item(it)
            if it[0] == 'raw' and " m0," in it[1]: i("s_nop 0")
    emit_seq(p1_stage(0, "xbw"))
    i("s_load_dwordx2 s[%d:%d], s[0:1], %d" % (S_W2, S_W2 + 1, K_W2 * 8))
    i("s_load_dwordx2 s[%d:%d], s[0:1], %d" % (S_CRE, S_CRE + 1, K_CRE * 8))
    i("s_load_dwordx2 s[%d:%d], s[0:1], %d" % (S_CIM, S_CIM + 1, K_CIM * 8))
    i("s_load_dwordx2 s[%d:%d], s[0:1], %d" % (P_B2, P_B2 + 1, K_B2 * 8))
    i("s_load_dwordx2 s[%d:%d], s[0:1], %d" % (P_GW, P_GW + 1, K_GATE * 8))
    i("s_load_dwordx2 s[%d:%d], s[0:1], %d" % (S_OUT, S_OUT + 1, K_OUT * 8))
    i("s_load_dwordx2 s[%d:%d], s[0:1], %d" % (S_DBG, S_DBG + 1, K_DBG * 8))
    def elast(nb): return 3 if nb % 2 == 0 else 0
    i("s_mul_i32 s%d, s%d, 224" % (T0, S_NI))
    i("s_lshl_b32 s%d, s%d, 5" % (T1, S_PAR))
    i("s_add_u32 s%d, s%d, s%d" % (T1, T1, T0))
    i("v_lshl_add_u32 v32, v31, 3, s%d" % T1)
    i("s_mul_i32 s%d, s%d, 224" % (T1, S_PAR))
    i("v_subrev_u32 v33, s%d, v32" % T1)
    for fb in range(7):
        r = acc1(4 + fb, elast(4 + fb))
        st.vm("global_load_dwordx2 v[%d:%d], v%d, s[%d:%d] offset:%d" % (r + 2, r + 3, 32 if fb < 6 else 33, P_B1, P_B1 + 1, fb * 32), 'b1')
    emit_seq(p1_stage(1, "xbw"))
    i("v_lshrrev_b32 v32, 1, v30")
    i("v_xor_b32 v32, v32, v31")
    i("v_lshlrev_b32 v32, 4, v32")
    i("v_lshl_add_u32 v32, v30, 7, v32")
    i("s_lshl_b32 s%d, s%d, 13" % (T0, S_W))
    i("v_add_u32 v%d, s%d, v32" % (V_RX, T0))
    i("v_xor_b32 v%d, 64, v%d" % (V_RX + 1, V_RX))
    i("v_add_u32 v%d, %d, v32" % (V_RB, B_LDS))
    i("v_xor_b32 v%d, 64, v%d" % (V_RB + 1, V_RB))
    i("v_bfe_u32 v32, v0, 2, 2")
    i("v_mul_u32_u24 v32, 224, v32")
    i("v_and_b32 v33, 3, v0")
    i("v_lshl_add_u32 v32, v33, 3, v32")
    i("v_lshl_add_u32 v32, v31, 11, v32")
    i("v_and_b32 v33, 1, v31")
    i("v_lshl_add_u32 v32, v33, 7, v32")
    i("v_add_u32 v%d, %d, v32" % (V_RW, W_LDS))
    i("v_lshlrev_b32 v%d, 4, v0" % V_L16)
    for r, nb in ((S_WS, WS_USED), (S_W2, 3584 * 2048), (S_CRE, 1024 * 2048), (S_CIM, 1024 * 2048), (S_OUT, 2048 * 4096), (S_DBG, 256), (S_MB, 16384)):
        i("s_mov_b32 s%d, 0x%x" % (r + 2, nb)); i("s_mov_b32 s%d, 0x20000" % (r + 3))
    i("s_lshl_b32 s%d, s%d, 14" % (T0, S_NI))
    i("s_add_u32 s%d, s%d, 0x%x" % (T0, T0, CB_OFF))
    i("s_add_u32 s%d, s%d, s%d" % (S_MB, S_WS, T0))
    i("s_addc_u32 s%d, s%d, 0" % (S_MB + 1, S_WS + 1))
    i("s_sub_u32 s%d, 31, s%d" % (T1, T2))
    i("s_lshl_b32 s%d, s%d, 9" % (T1, T1))
    i("s_add_u32 s%d, s%d, s%d" % (S_CBO, T0, T1))
    if stamps:
        for q in range(4): i("v_accvgpr_write_b32 a%d, s%d" % (224 + q, 92 + q))
    i("s_lshl2_add_u32 s%d, s%d, s%d" % (T0, S_MI, S_B))
    i("s_lshl2_add_u32 s%d, s%d, s%d" % (T0, T0, S_W))
    i("s_mul_i32 s%d, s%d, 180224" % (T0, T0))
    i("s_sub_u32 s%d, s%d, 0x%x" % (T0, T0, BIG))
    i("s_mul_i32 s8, s%d, %d" % (S_B, 896 * 2048))
    i("s_sub_u32 s8, s8, 0x%x" % BIG)
    i("s_lshl_b32 s9, s%d, 9" % S_B)
    for sg in range(4):
        i("s_lshr_b32 s%d, s%d, 1" % (T1, S_J))
        i("s_add_u32 s%d, s%d, %d" % (T1, T1, sg))
        i("s_and_b32 s%d, s%d, 3" % (T1, T1))
        i("s_mul_i32 s10, s%d, 45056" % T1)
        i("s_add_u32 s%d, s%d, s10" % (S_H + sg, T0))
        i("s_mul_i32 s10, s%d, %d" % (T1, 224 * 2048))
        i("s_add_u32 s%d, s8, s10" % (S_WT + sg))
        i("s_lshl_b32 s10, s%d, 7" % T1)
        i("s_add_u32 s%d, s9, s10" % (S_CT + sg))
    i("s_xor_b32 s%d, s%d, 1" % (T1, S_PAR))
    i("s_lshl_b32 s10, s%d, 14" % T1)
    i("s_add_u32 s%d, s%d, s10" % (S_HP, S_H))
    i("s_lshl_b32 s10, s%d, 12" % T1)
    i("s_add_u32 s10, s10, %d" % (7 * 4096))
    i("s_add_u32 s%d, s%d, s10" % (S_HP + 1, S_H))
    i("s_lshl_b32 s10, s%d, 14" % S_PAR)
    i("s_add_u32 s%d, s%d, s10" % (S_HP + 2, S_H))
    i("s_lshl_b32 s10, s%d, 12" % S_PAR)
    i("s_add_u32 s10, s10, %d" % (7 * 4096))
    i("s_add_u32 s%d, s%d, s10" % (S_HP + 3, S_H))
    i("s_lshl_b32 s10, s%d, 18" % S_PAR)
    i("s_add_u32 s%d, s%d, s10" % (S_WOWN, S_WT))
    i("s_lshl_b32 s10, s%d, 18" % T1)
    i("s_add_u32 s%d, s%d, s10" % (S_WPAR, S_WT))
    i("s_mov_b32 s%d, %s" % (S_GC, fl(-0.1029432397)))
    i("s_mov_b32 s%d, %s" % (S_GC + 1, fl(-2.302208198)))
    i("s_mov_b32 s%d, %d" % (S_SPIN, spinmax))
    i("s_waitcnt lgkmcnt(0)")
    st.vm_wait(p1_tags(0) + ['b1'])
    i("s_barrier")
    stamp(1)

    NS = 16
    def xf(s, kh, e): return XF0 + (s % 2) * 32 + (kh * 4 + e) * 4
    def wf(G, kh): return WF0 + (G % NP) * 8 + kh * 4
    def x_read(s, kh, e):
        return ('ds', "ds_read_b128 %s, v%d offset:%d" % (aq(xf(s, kh, e)), V_RX + kh, (s % 2) * 32768 + e * 2048), ('x', s, kh, e))
    def w_reads(G):
        s, nb = divmod(G, 11); out = []
        for kh in range(2):
            r = wf(G, kh)
            if nb < 4:
                out.append(('ds', "ds_read_b128 %s, v%d offset:%d" % (aq(r), V_RB + kh, (s % 3) * 8192 + nb * 2048), ('w', G)))
            else:
                for h in range(2):
                    out.append(('ds', "ds_read_b64_tr_b16 %s, v%d offset:%d" % (aq(r + 2 * h, 2), V_RW, (s % 3) * 16384 + kh * 8192 + h * 1024 + (nb - 4) * 32), ('w', G)))
        return out
    g1 = Gaps(NS * 88)
    for G in range(NS * 11): g1.g[G * 8 + 7].append(('resv',))
    for s in range(NS):
        for nb in range(11):
            G = s * 11 + nb
            if (nb >= D1 or s == 0) and G >= D1: g1.place(w_reads(G), (G - D1) * 8, (G - D1) * 8 + 7)
        if s + 1 < NS:
            b0 = (s * 11 + BAR1) * 8
            wr = [w_reads((s + 1) * 11 + q) for q in range(D1)]
            xs = [x_read(s + 1, kh, e) for e in range(4) for kh in range(2)]
            g1.place(wr[0] + xs[:4] + wr[1] + xs[4:], b0, b0 + 15)
            for q in range(2, D1): g1.place(wr[q], (s + 1) * 88, (s + 1) * 88 + 4)
    for s in range(NS - 2):
        g1.place(p1_stage(s + 2), s * 88 + 8, s * 88 + BAR1 * 8)
    seq, ftiles, ctiles = p2_seq()
    it14 = sum([unit_items(ftiles[k]) for k in range(5)], [])
    it15 = sum([unit_items(ctiles[k], h) for k in range(2) for h in range(2)], []) + unit_items(ftiles[5]) + unit_items(ftiles[6])
    g1.place(it14, 14 * 88 + 8, 14 * 88 + BAR1 * 8)
    g1.place(it15, 15 * 88 + 0, 15 * 88 + 80)
    bg = []
    for fb in range(7):
        r = acc1(4 + fb, elast(4 + fb))
        bg += [R("v_lshlrev_b32 v%d, 16, v%d" % (r, r + 2)), R("v_and_b32 v%d, 0xffff0000, v%d" % (r + 1, r + 2)),
               R("v_lshlrev_b32 v%d, 16, v%d" % (r + 2, r + 3)), R("v_and_b32 v%d, 0xffff0000, v%d" % (r + 3, r + 3))]
    g1.place(bg[:12], 0, 26); g1.place(bg[12:], 26, 50)
    bg = [R("v_lshlrev_b32 v78, 3, v0"), R("v_mov_b32 v64, -1"), R("v_mov_b32 v65, -1"),
          ('vm', "buffer_store_dwordx2 v[64:65], v78, %s, s%d offen sc1" % (sq(S_WS), S_CBO), 'clr'),
          R("s_lshl_b32 s%d, s%d, 5\ns_add_u32 s%d, s%d, s%d" % (T0, S_MI, T0, T0, S_NI)),
          R("s_lshl2_add_u32 s%d, s%d, s%d\ns_lshl_b32 s%d, s%d, 12" % (T0, T0, S_W, T0, T0)),
          R("v_and_b32 v78, 31, v0"), R("v_lshlrev_b32 v78, 4, v78"), R("v_lshrrev_b32 v7, 5, v0"),
          R("v_lshl_add_u32 v7, v7, 11, v78")]
    for q in range(4):
        bg.append(('vm', "buffer_load_dwordx4 %s, v7, %s, s%d offen offset:%d" % (vq(24 + 4 * q), sq(S_X), T0, q * 512), 'gx'))
        bg.append(('vm', "global_load_dwordx4 %s, v78, s[%d:%d] offset:%d" % (vq(40 + 4 * q), P_GW, P_GW + 1, q * 512), 'gx'))
    bg += [R("v_and_b32 v78, 15, v0"), R("s_lshl_b32 s%d, s%d, 6" % (T1, S_NI)), R("v_lshl_add_u32 v78, v78, 1, s%d" % T1)]
    for k, p in enumerate((P_LRE, P_LIM, P_LDT)):
        for cb in range(2):
            bg.append(('vm', "global_load_ushort v%d, v78, s[%d:%d] offset:%d" % (66 + 2 * k + cb, p, p + 1, cb * 32), 'lam'))
    g1.place(bg, 52, 88 + 70)
    bg = [('needvm', ['gx', 'lam'])]
    if mimic:
        bg += [R("v_mov_b32 v64, 0"), R("v_mov_b32 v65, 0x3f803f80")]
        for q in range(16):
            x, w_ = 24 + q, 40 + q
            t = 56 + 4 * (q % 2)
            bg += [R("v_lshlrev_b32 v%d, 16, v%d" % (t, x)), R("v_and_b32 v%d, 0xffff0000, v%d" % (t + 1, x)),
                   R("v_lshlrev_b32 v%d, 16, v%d" % (t + 2, w_)), R("v_and_b32 v%d, 0xffff0000, v%d" % (t + 3, w_)),
                   R("v_mul_f32 v%d, v%d, v%d" % (t, t, t + 2)), R("v_mul_f32 v%d, v%d, v%d" % (t + 1, t + 1, t + 3)),
                   R("v_cvt_pk_bf16_f32 v%d, v%d, v%d" % (t, t, t + 1)),
                   R("v_dot2c_f32_bf16 v64, v%d, v65" % t)]
    else:
        bg += [R("v_mov_b32 v64, 0")]
        for q in range(16): bg.append(R("v_dot2c_f32_bf16 v64, v%d, v%d" % (24 + q, 40 + q)))
    for d in ("quad_perm:[1,0,3,2]", "quad_perm:[2,3,0,1]", "row_half_mirror", "row_mirror"):
        bg.append(R("s_nop 2\nv_add_f32_dpp v64, v64, v64 %s row_mask:0xf bank_mask:0xf" % d))
    bg += [R("v_mov_b32 v65, v64"), R("s_nop 1\nv_permlane16_swap_b32 v64, v65"), R("s_nop 1\nv_add_f32 v64, v64, v65"),
           R("v_cvt_pk_bf16_f32 v64, v64, v64"), R("v_lshlrev_b32 v64, 16, v64"),
           R("v_mul_f32 v64, %s, v64" % fl(-1.4426950408889634)), R("v_exp_f32 v64, v64"), R("s_nop 0\nv_add_f32 v64, 1.0, v64"),
           R("v_rcp_f32 v64, v64"), R("s_nop 0\nv_cvt_pk_bf16_f32 v64, v64, v64"), R("v_lshlrev_b32 v64, 16, v64"),
           R("v_and_b32 v65, 31, v0"), R("v_cmp_eq_u32 vcc, 0, v65"), R("v_lshrrev_b32 v65, 3, v0"), R("v_bfrev_b32 v7, 1"),
           R("s_lshr_b32 s%d, s%d, 9\ns_add_u32 s%d, s%d, 0x%x" % (T0, T0, T0, T0, G_OFF)),
           R("v_cndmask_b32 v65, v7, v65, vcc"),
           ('vm', "buffer_store_dword v64, v65, %s, s%d offen sc1" % (sq(S_WS), T0), 'gst')]
    g1.place(bg, 3 * 88, 7 * 88 - 20)
    bg = [R("v_or_b32 v65, s%d, v0" % S_W), R("v_cmp_eq_u32 vcc, 0, v65"), R("v_mov_b32 v64, 1"), R("v_bfrev_b32 v7, 1"),
          R("s_nop 0\nv_cndmask_b32 v65, v7, v65, vcc")]
    g1.place(bg, 7 * 88, 7 * 88 + 40)
    ARR = 7
    g1.place([('vm', "buffer_atomic_add v64, v65, %s, 0 offen" % sq(S_DBG), 'arr')], ARR * 88 + BAR1 * 8 + 2, ARR * 88 + BAR1 * 8 + 6)
    bg = []
    o = lambda t: bg.append(R(t))
    for cb in range(2):
        for k in range(3): o("v_lshlrev_b32 v%d, 16, v%d" % (24 + 2 * k + cb, 66 + 2 * k + cb))
    for cb in range(2): o("v_mul_f32 v%d, %s, v%d" % (28 + cb, fl(1.4426950408889634), 28 + cb))
    for cb in range(2): o("v_exp_f32 v%d, v%d" % (28 + cb, 28 + cb))
    o("s_nop 0\nv_cvt_pk_bf16_f32 v30, v28, v29")
    o("v_lshlrev_b32 v28, 16, v30"); o("v_and_b32 v29, 0xffff0000, v30")
    for cb in range(2):
        o("v_mul_f32 v%d, v%d, v%d" % (30 + cb, 28 + cb, 24 + cb))
        o("v_mul_f32 v%d, v%d, v%d" % (32 + cb, 28 + cb, 26 + cb))
    for cb in range(2):
        o("v_mul_f32 v%d, %s, v%d" % (30 + cb, fl(1.4426950408889634), 30 + cb))
        o("v_mul_f32 v%d, 0.15915494, v%d" % (32 + cb, 32 + cb))
    o("v_lshrrev_b32 v34, 4, v0"); o("v_cvt_f32_u32 v34, v34")
    o("v_mul_f32 v35, %s, v34" % fl(512.0)); o("v_mul_f32 v34, %s, v34" % fl(16.0))
    for dst, n in ((V_L1, "1.0"), (V_L2, "2.0"), (V_L16P, fl(16.0)), (V_L64, fl(64.0)), (V_L512G, "v35"), (V_L16G, "v34")):
        l = [[], []]
        for cb in range(2):
            t = 36 + 4 * cb
            l[cb] = ["v_mul_f32 v%d, %s, v%d" % (t, n, 30 + cb), "v_mul_f32 v%d, %s, v%d" % (t + 1, n, 32 + cb),
                     "v_exp_f32 v%d, v%d" % (t, t), "v_rndne_f32 v%d, v%d" % (t + 2, t + 1), "v_sub_f32 v%d, v%d, v%d" % (t + 1, t + 1, t + 2),
                     "v_cos_f32 v%d, v%d" % (t + 2, t + 1), "v_sin_f32 v%d, v%d" % (t + 3, t + 1),
                     "v_mul_f32 v%d, v%d, v%d" % (dst + 2 * cb, t, t + 2), "v_mul_f32 v%d, v%d, v%d" % (dst + 2 * cb + 1, t, t + 3)]
        for t in interleave(*l): o(t)
    l = [[], []]
    for cb in range(2):
        t = 36 + 4 * cb; re, im = 24 + cb, 26 + cb; lr, li = V_L1 + 2 * cb, V_L1 + 2 * cb + 1
        l[cb] = ["v_mul_f32 v%d, v%d, v%d" % (t, re, re), "v_fmac_f32 v%d, v%d, v%d" % (t, im, im), "v_rcp_f32 v%d, v%d" % (t, t),
                 "v_add_f32 v%d, -1.0, v%d" % (t + 1, lr), "v_add_f32 v%d, v%d, v%d" % (t, t, t),
                 "v_mul_f32 v%d, v%d, v%d" % (t + 2, t + 1, re), "v_mul_f32 v%d, v%d, v%d" % (t + 3, li, re),
                 "v_fmac_f32 v%d, v%d, v%d" % (t + 2, li, im), "v_fma_f32 v%d, -v%d, v%d, v%d" % (t + 3, t + 1, im, t + 3),
                 "v_mul_f32 v%d, v%d, v%d" % (V_CO + 2 * cb, t + 2, t), "v_mul_f32 v%d, v%d, v%d" % (V_CO + 2 * cb + 1, t + 3, t)]
    for t in interleave(*l): o(t)
    g1.place(bg, 8 * 88, 12 * 88 + 40)
    bg = []
    o = lambda t: bg.append(R(t))
    o("v_lshrrev_b32 v32, 4, v0")
    o("v_bfe_u32 v33, v0, 1, 3")
    o("v_xor_b32 v33, v33, v32")
    o("s_lshl_b32 s%d, s%d, 1" % (T0, S_B))
    o("v_add_u32 v33, s%d, v33" % T0)
    o("v_and_b32 v33, 7, v33")
    o("v_and_b32 v34, 1, v0")
    o("v_lshlrev_b32 v34, 4, v34")
    o("v_lshl_add_u32 v33, v33, 5, v34")
    o("v_lshl_add_u32 v33, v32, 11, v33")
    o("s_lshl_b32 s%d, s%d, 8\nv_add_u32 v33, s%d, v33" % (T0, S_J, T0))
    o("v_xor_b32 v34, 0x80, v33")
    o("s_lshl_b32 s%d, s%d, 14\nv_add_u32 v%d, s%d, v33" % (T0, S_W, V_DF, T0))
    o("s_add_u32 s%d, s%d, %d\nv_add_u32 v%d, s%d, v34" % (T0, T0, 8192 - 1024, V_DF + 1, T0))
    o("s_and_b32 s%d, s%d, 1\ns_lshr_b32 s%d, s%d, 1" % (T0, S_W, T1, S_W))
    o("s_lshl2_add_u32 s%d, s%d, s%d\ns_lshl_b32 s%d, s%d, 13" % (T0, T0, T1, T0, T0))
    o("v_add_u32 v%d, s%d, v33" % (V_DS, T0))
    o("s_add_u32 s%d, s%d, %d\nv_add_u32 v%d, s%d, v34" % (T0, T0, 16384 - 1024, V_DS + 1, T0))
    o("v_and_b32 v33, 7, v0"); o("v_xor_b32 v33, v33, v32"); o("v_lshlrev_b32 v33, 4, v33")
    o("v_lshrrev_b32 v34, 3, v0"); o("v_lshl_add_u32 v33, v34, 11, v33")
    o("s_add_u32 s%d, s%d, s%d\ns_and_b32 s%d, s%d, 3" % (T0, S_W, S_B, T0, T0))
    o("s_lshl2_add_u32 s%d, s%d, s%d\ns_lshl_b32 s%d, s%d, 16" % (T0, S_J, T0, T0, T0))
    o("v_add_u32 v33, s%d, v33" % T0); o("v_xor_b32 v34, 64, v33")
    for q in range(4): o("v_add_u32 v%d, %d, v%d" % (V_DC + q, q * (16384 - 1024), 34 if q & 1 else 33))
    g1.place(bg, 12 * 88 + 42, 13 * 88 + 70)
    ld_arr = "buffer_load_dword v78, off, %s, 0 sc1" % sq(S_DBG)
    g1.place([('vm', ld_arr, 'arrld')], 12 * 88 + 60, 12 * 88 + 66)
    bg = [('needvm', ['arrld']), R(spin("arr", ld_arr, "v_readfirstlane_b32 s%d, v78\ns_nop 0\ns_cmp_ge_u32 s%d, 256" % (T0, T0))),
          R("s_lshl_b32 s%d, s%d, 8\ns_add_u32 s%d, s%d, 0x%x" % (T0, T2, T0, T0, G_OFF)),
          R("v_and_b32 v78, 48, v0"), R("v_lshlrev_b32 v78, 2, v78"),
          R("v_and_b32 v7, 12, v0"), R("v_and_b32 v79, 3, v0"), R("v_lshl_add_u32 v7, v7, 2, v79"), R("v_lshlrev_b32 v7, 2, v7")]
    for q in range(4): bg.append(('vm', "buffer_load_dwordx4 %s, v78, %s, s%d offen offset:%d sc1" % (vq(V_G + 4 * q), sq(S_WS), T0, q * 16), 'gld'))
    for q in range(4): bg.append(('vm', "buffer_load_dword v%d, v7, %s, s%d offen offset:%d sc1" % (V_GE + q, sq(S_WS), T0, q * 16), 'gld'))
    g1.place(bg, 14 * 88, 14 * 88 + 60)

    for e in range(4):
        for kh in range(2): st.item(x_read(0, kh, e))
    for G in range(D1):
        for it in w_reads(G): st.item(it)
    i(".p2align 3")
    t = 0
    for G in range(NS * 11):
        s, nb = divmod(G, 11)
        if nb == BAR1 and s + 1 < NS:
            tags = p1_tags(s + 1)
            if s == 2: tags += ['gx', 'lam']
            if s == ARR: tags += ['gst', 'clr']
            if s == 13: tags += ['arrld']
            st.vm_wait(tags, " lgkmcnt(0)"); st.ds_done = st.ds_issued
            i("s_barrier")
        n = 0
        for e0 in range(4):
            e = e0 if nb % 2 == 0 else 3 - e0
            for k0 in range(2):
                kh = k0 ^ t
                fr = [('w', G)] + ([('x', s, k, ee) for k in range(2) for ee in range(4)] if nb > 0 else [('x', s, 0, e), ('x', s, 1, e)])
                if nb == 0 and e0 in (0, 2): fr += [('x', s, 0, e + 1), ('x', s, 1, e + 1)]
                st.need(fr)
                d = vq(acc1(nb, e)); c = d
                if s == 0 and k0 == 0: c = "0" if nb < 4 else vq(acc1(nb, elast(nb)))
                if nb < 4: i("v_mfma_f32_16x16x32_bf16 %s, %s, %s, %s" % (d, aq(xf(s, kh, e)), aq(wf(G, kh)), c))
                else: i("v_mfma_f32_16x16x32_bf16 %s, %s, %s, %s" % (d, aq(wf(G, kh)), aq(xf(s, kh, e)), c))
                g1.emit(st, G * 8 + n); n += 1
            t ^= 1
    stamp(2)

    RE = [acc1(0, 0), acc1(1, 0)]; IM = [acc1(2, 0), acc1(3, 0)]
    for tau in range(1, 16):
        l = [[], []]
        for cb in range(2):
            cfma(l[cb].append, RE[cb] + tau, IM[cb] + tau, V_L1 + 2 * cb, V_L1 + 2 * cb + 1, RE[cb] + tau - 1, IM[cb] + tau - 1)
        for t_ in interleave(*l): i(t_)
    i("v_lshrrev_b32 v6, 4, v0")
    i("v_cmp_eq_u32 s[8:9], 1, v6"); i("v_cmp_eq_u32 s[10:11], 2, v6"); i("v_cmp_eq_u32 vcc, 3, v6")
    for cb in range(2):
        E = {}
        ra = [32, 33, 34, 35]; rb = [40, 41, 78, 79]
        for comp, src, rr in ((0, RE[cb] + 15, ra), (1, IM[cb] + 15, rb)):
            i("v_mov_b32 v%d, v%d" % (rr[0], src)); i("v_mov_b32 v%d, v%d" % (rr[1], src))
        i("s_nop 0")
        for rr in (ra, rb): i("v_permlane16_swap_b32 v%d, v%d" % (rr[0], rr[1]))
        i("s_nop 0")
        for rr in (ra, rb):
            i("v_mov_b32 v%d, v%d" % (rr[2], rr[0])); i("v_mov_b32 v%d, v%d" % (rr[3], rr[1]))
        i("s_nop 0")
        for rr in (ra, rb):
            i("v_permlane32_swap_b32 v%d, v%d" % (rr[0], rr[2])); i("v_permlane32_swap_b32 v%d, v%d" % (rr[1], rr[3]))
        i("s_nop 0")
        lr, li = V_L16P + 2 * cb, V_L16P + 2 * cb + 1
        for g in range(1, 4): cfma(i, ra[g], rb[g], lr, li, ra[g - 1], rb[g - 1])
        for comp, rr in ((0, ra), (1, rb)):
            p = 2 + 2 * cb + comp
            i("v_cndmask_b32 v%d, 0, v%d, s[8:9]" % (p, rr[0]))
            i("v_cndmask_b32 v%d, v%d, v%d, s[10:11]" % (p, p, rr[1]))
            i("v_cndmask_b32 v%d, v%d, v%d, vcc" % (p, p, rr[2]))
            i("v_mov_b32 v%d, v%d" % (36 + 2 * cb + comp, rr[3]))
    i("v_cmp_gt_u32 vcc, 16, v0")
    i("v_bfrev_b32 v7, 1")
    i("s_nop 0")
    i("v_cndmask_b32 v6, v7, v%d, vcc" % V_L16)
    st.vm("buffer_store_dwordx4 v[36:39], v6, %s, s%d offen sc1" % (sq(S_WS), S_CBO), 'pub')
    st.vm_wait(['gld'])
    for e in range(4): i("v_sub_f32 v%d, 1.0, v%d" % (V_OMG + e, V_GE + e))
    for e in (0, 2):
        i("v_cvt_pk_bf16_f32 v6, v%d, v%d" % (V_OMG + e, V_OMG + e + 1))
        i("v_lshlrev_b32 v%d, 16, v6" % (V_OMG + e)); i("v_and_b32 v%d, 0xffff0000, v6" % (V_OMG + e + 1))
    def gelu_quads(srcs, e_list, dsts):
        l = []
        for k, (u, e) in enumerate(zip(srcs, e_list)):
            t_ = 32 + 2 * k; U = vq(u, 2); T = vq(t_, 2)
            om = vq(V_OMG + (e & 2), 2); sel = "op_sel:[0,%d] op_sel_hi:[1,%d]" % (e & 1, e & 1)
            l.append(["v_pk_mul_f32 %s, %s, %s" % (T, U, U),
                      "v_pk_fma_f32 %s, %s, s[%d:%d], s[%d:%d] op_sel:[0,0,1] op_sel_hi:[1,0,1]" % (T, T, S_GC, S_GC + 1, S_GC, S_GC + 1),
                      "v_pk_mul_f32 %s, %s, %s" % (T, T, U),
                      "v_exp_f32_e64 v%d, v%d" % (t_, t_), "v_exp_f32_e64 v%d, v%d" % (t_ + 1, t_ + 1),
                      "v_pk_mul_f32 %s, %s, %s %s" % (U, U, om, sel),
                      "v_pk_add_f32 %s, %s, 1.0 op_sel_hi:[1,0]" % (T, T),
                      "v_rcp_f32_e64 v%d, v%d" % (t_, t_), "v_rcp_f32_e64 v%d, v%d" % (t_ + 1, t_ + 1),
                      "v_pk_mul_f32 %s, %s, %s" % (T, T, U)])
        for t_ in interleave(*l): i(t_)
        for k, d in enumerate(dsts): i("v_cvt_pk_bf16_f32 v%d, v%d, v%d" % (d, 32 + 2 * k, 33 + 2 * k))
    CAR = [160 + 4 * u for u in range(4)] + [192 + 4 * u for u in range(4)]
    car_ld = ["buffer_load_dwordx4 %s, v40, %s, 0 offen offset:%d sc1" % (vq(CAR[u]), sq(S_MB), u * 512) for u in range(8)]
    i("v_lshrrev_b32 v40, 4, v0"); i("v_and_b32 v41, 15, v0"); i("v_lshlrev_b32 v41, 4, v41")
    i("v_lshl_add_u32 v40, v40, 12, v41")
    i("s_sub_u32 s%d, 32, s%d" % (T0, T2)); i("s_lshl_b32 s%d, s%d, 9" % (T0, T0))
    i("v_add_u32 v40, s%d, v40" % T0)
    i(".p2align 3")
    for q in range(3):
        i("s_add_u32 s%d, s%d, 0x%x" % (O_H, S_HP + 2, q * 4096 + BIG))
        for e in range(4):
            X = acc1(4 + 2 * q, e); Y = acc1(5 + 2 * q, e)
            gelu_quads([X, X + 2, Y, Y + 2], [e] * 4, [X, X + 1, X + 2, X + 3])
            st.vm("buffer_store_dwordx4 %s, v%d, %s, s%d offen offset:%d sc1" % (vq(X), V_L16, sq(S_WS), O_H, e * 1024), 'hF')
        if q == 1:
            for t_ in car_ld: st.vm(t_, 'car')
    i("v_bfe_u32 v6, v0, 4, 1"); i("v_lshrrev_b32 v7, 5, v0"); i("v_lshl_add_u32 v6, v6, 2, v7")
    i("v_lshl_add_u32 v6, v6, 8, v41")
    i("s_lshl_b32 s%d, s%d, 9" % (T0, S_PAR)); i("s_add_u32 s%d, s%d, s%d" % (T0, T0, S_H))
    i("s_add_u32 s%d, s%d, 0x%x" % (O_H, T0, 3 * 4096 + BIG))
    for e0 in (0, 2):
        X = acc1(10, e0)
        gelu_quads([X, X + 2, X + 4, X + 6], [e0, e0, e0 + 1, e0 + 1], [X, X + 1, X + 2, X + 3])
        i("s_nop 1")
        i("v_permlane16_swap_b32 v%d, v%d" % (X, X + 2)); i("v_permlane16_swap_b32 v%d, v%d" % (X + 1, X + 3))
        st.vm("buffer_store_dwordx4 %s, v6, %s, s%d offen offset:%d sc1" % (vq(X), sq(S_WS), O_H, e0 * 1024), 'hF')
    stamp(3)
    st.vm_wait([('F', k) for k in range(7)] + [('C', 0), ('C', 1), 'car'])
    i("s_barrier")
    test = "\n".join(["v_and_b32 v6, v%d, v%d" % (CAR[0], CAR[0])] * 0 +
                     ["v_max3_u32 v6, v%d, v%d, v%d" % (CAR[0], CAR[1], CAR[2]), "v_max3_u32 v7, v%d, v%d, v%d" % (CAR[3], CAR[4], CAR[5]),
                      "v_max3_u32 v6, v6, v%d, v%d" % (CAR[6], CAR[7]), "v_max_u32 v6, v6, v7",
                      "v_cmp_eq_u32 vcc, -1, v6", "s_cmp_eq_u64 vcc, 0"])
    st.item(R(spin("car", "\n".join(car_ld), test)))
    for u in range(6, -1, -1):
        l = [[], []]
        for cb in range(2):
            cfma(l[cb].append, CAR[u] + 2 * cb, CAR[u] + 2 * cb + 1, V_L64 + 2 * cb, V_L64 + 2 * cb + 1, CAR[u + 1] + 2 * cb, CAR[u + 1] + 2 * cb + 1)
        for t_ in interleave(*l): i(t_)
    l = [[], []]
    for cb in range(2):
        cmul(l[cb].append, 32 + 2 * cb, 33 + 2 * cb, V_L512G + 2 * cb, V_L512G + 2 * cb + 1, CAR[0] + 2 * cb, CAR[0] + 2 * cb + 1)
    for t_ in interleave(*l): i(t_)
    for sw in ("v_permlane16_swap_b32", "v_permlane32_swap_b32"):
        for k in range(4): i("v_mov_b32 v%d, v%d" % (36 + k, 32 + k))
        i("s_nop 0")
        for k in range(4): i("%s v%d, v%d" % (sw, 32 + k, 36 + k))
        for k in range(4): i("v_add_f32 v%d, v%d, v%d" % (32 + k, 32 + k, 36 + k))
    QR = [224, 232]; QI = [226, 234]; TA = [228, 236]; TB = [230, 238]; QN = [32, 34]
    l = [[], []]
    for cb in range(2):
        o = l[cb].append
        cfma(o, 2 + 2 * cb, 3 + 2 * cb, V_L16G + 2 * cb, V_L16G + 2 * cb + 1, 32 + 2 * cb, 33 + 2 * cb)
        cmul(o, 36 + 2 * cb, 37 + 2 * cb, V_CO + 2 * cb, V_CO + 2 * cb + 1, 2 + 2 * cb, 3 + 2 * cb)
        cmul(o, QR[cb], QI[cb], V_L1 + 2 * cb, V_L1 + 2 * cb + 1, 36 + 2 * cb, 37 + 2 * cb)
        cmul(o, QR[cb] + 1, QI[cb] + 1, V_L2 + 2 * cb, V_L2 + 2 * cb + 1, 36 + 2 * cb, 37 + 2 * cb)
    for t_ in interleave(*l): i(t_)
    i("v_bfe_u32 v36, v0, 1, 2"); i("v_and_b32 v37, 1, v0"); i("v_lshl_or_b32 v36, v37, 2, v36")
    i("v_lshrrev_b32 v37, 4, v0"); i("v_lshlrev_b32 v37, 1, v37"); i("v_xor_b32 v36, v36, v37")
    i("v_and_b32 v37, 15, v0"); i("v_lshlrev_b32 v37, 7, v37"); i("v_lshl_add_u32 v36, v36, 4, v37")
    i("s_lshl_b32 s%d, s%d, 13" % (T0, S_W)); i("s_add_u32 s%d, s%d, %d" % (T0, T0, T_LDS))
    i("v_add_u32 v6, s%d, v36" % T0); i("v_xor_b32 v7, 16, v6")
    i("v_bfe_u32 v36, v0, 3, 1"); i("v_bfe_u32 v37, v0, 2, 1"); i("v_lshl_or_b32 v36, v37, 2, v36")
    i("v_and_b32 v37, 3, v0"); i("v_lshlrev_b32 v37, 1, v37"); i("v_xor_b32 v36, v36, v37")
    i("v_bfe_u32 v37, v0, 2, 2"); i("v_lshlrev_b32 v37, 7, v37"); i("v_lshl_add_u32 v36, v36, 4, v37")
    i("v_lshrrev_b32 v37, 4, v0"); i("v_lshl_add_u32 v36, v37, 10, v36")
    i("v_add_u32 v40, s%d, v36" % T0); i("v_xor_b32 v41, 16, v40")
    i("v_xor_b32 v78, 32, v40"); i("v_xor_b32 v79, 48, v40")
    i(".p2align 3")
    LO = "op_sel:[0,0,0] op_sel_hi:[1,0,1]"; HI = "op_sel:[0,1,0] op_sel_hi:[1,1,1]"; NG = " neg_lo:[0,1,0] neg_hi:[0,1,0]"
    qr = list(QR); qn = list(QN)
    for p in range(8):
        l = [[], []]
        for cb in range(2):
            o = l[cb].append
            sr, si = vq(RE[cb] + 2 * p, 2), vq(IM[cb] + 2 * p, 2)
            co, l2 = vq(V_CO + 2 * cb, 2), vq(V_L2 + 2 * cb, 2)
            ta, tb, q_r, q_i, q_n = vq(TA[cb], 2), vq(TB[cb], 2), vq(qr[cb], 2), vq(QI[cb], 2), vq(qn[cb], 2)
            gg = vq(V_G + 2 * p, 2)
            o("v_pk_fma_f32 %s, %s, %s, %s %s" % (ta, sr, co, q_r, LO))
            o("v_pk_fma_f32 %s, %s, %s, %s %s" % (tb, si, co, q_i, LO))
            o("v_pk_fma_f32 %s, %s, %s, %s %s" % (ta, si, co, ta, HI + NG))
            o("v_pk_fma_f32 %s, %s, %s, %s %s" % (tb, sr, co, tb, HI))
            if p < 7:
                o("v_pk_mul_f32 %s, %s, %s op_sel:[0,0] op_sel_hi:[1,0]" % (q_n, q_r, l2))
                o("v_pk_fma_f32 %s, %s, %s, %s %s" % (q_n, q_i, l2, q_n, HI + NG))
                o("v_pk_mul_f32 %s, %s, %s op_sel:[0,0] op_sel_hi:[1,0]" % (q_i, q_i, l2))
                o("v_pk_fma_f32 %s, %s, %s, %s %s" % (q_i, q_r, l2, q_i, HI))
            o("v_pk_mul_f32 %s, %s, %s" % (ta, ta, gg))
            o("v_pk_mul_f32 %s, %s, %s neg_lo:[0,1] neg_hi:[0,1]" % (tb, tb, gg))
            o("v_cvt_pk_bf16_f32 v%d, v%d, v%d" % (RE[cb] + p, TA[cb], TA[cb] + 1))
            o("v_cvt_pk_bf16_f32 v%d, v%d, v%d" % (IM[cb] + p, TB[cb], TB[cb] + 1))
            qr[cb], qn[cb] = qn[cb], qr[cb]
        for t_ in interleave(*l): i(t_)
        if p in (3, 7):
            hh = p // 4
            for part, RR in enumerate((RE, IM)):
                for cb in range(2):
                    st.ds("ds_write_b128 v%d, %s offset:%d" % (6 + hh, vq(RR[cb] + 4 * hh), part * 4096 + cb * 2048))
    for part in range(2):
        for e in range(4):
            for h in range(2):
                rb_ = ((40, 41), (78, 79))[h][e >> 1]
                st.ds("ds_read_b64_tr_b16 %s, v%d offset:%d" % (aq((A_SRE, A_SIM)[part] + 4 * e + 2 * h, 2), rb_, part * 4096 + h * 512 + (e & 1) * 8), ('T', part, e))
    i("v_lshrrev_b32 v6, 4, v0"); i("v_bfe_u32 v7, v0, 2, 2")
    i("v_and_b32 v2, 1, v6"); i("v_lshl_or_b32 v2, v2, 2, v7"); i("v_lshlrev_b32 v2, 5, v2")
    i("v_lshl_add_u32 v2, v7, 8, v2"); i("v_lshl_add_u32 v2, v6, 10, v2")
    i("v_and_b32 v7, 3, v0"); i("v_lshl_add_u32 v2, v7, 3, v2")
    i("v_add_u32 v%d, %d, v2" % (V_RF, F_LDS))
    for lam in range(1, 8): i("v_xor_b32 v%d, %d, v%d" % (V_RF + lam, lam * 32, V_RF))
    for part in range(2):
        i("s_add_u32 s%d, s%d, 0x%x" % (O_H, S_HP + 3, part * 8192 + BIG))
        for e in range(4):
            st.need([('T', part, e)])
            st.vm("buffer_store_dwordx4 %s, v%d, %s, s%d offen offset:%d sc1" % (aq((A_SRE, A_SIM)[part] + 4 * e), V_L16, sq(S_WS), O_H, e * 1024), 'hS')
    i("v_and_b32 v7, 15, v0"); i("v_lshrrev_b32 v2, 1, v7"); i("v_xor_b32 v2, v2, v6"); i("v_lshlrev_b32 v2, 4, v2")
    i("v_lshl_add_u32 v%d, v7, 7, v2" % V_RC); i("v_xor_b32 v%d, 64, v%d" % (V_RC + 1, V_RC))
    i("s_lshl_b32 s%d, s%d, 6" % (T0, S_PAR))
    i("v_xor_b32 v2, s%d, v%d" % (T0, V_RC)); i("v_xor_b32 v3, 64, v2")
    S_FL = 100
    i("s_lshl_b32 s%d, s%d, 14" % (T0, S_J)); i("s_sub_u32 s%d, s%d, s%d" % (S_FL, S_CBO, T0)); i("s_add_u32 s%d, s%d, 384" % (S_FL, S_FL))
    i("v_cmp_eq_u32 vcc, s%d, v0" % S_J); i("v_bfrev_b32 v7, 1"); i("v_lshlrev_b32 v5, 2, v0")
    i("v_cndmask_b32 v4, v7, v5, vcc"); i("v_and_b32 v5, 28, v5"); i("v_mov_b32 v6, 0")

    NU = 22
    def hreg(n, e):
        h = seq[n]['h']
        if h[0] == 'v': return vq(h[1] + 4 * e)
        if h[0] == 'a': return aq(h[1] + 4 * e)
        return aq(A_H + ((n // 2) % 3) * 32 + (n % 2) * 16 + 4 * e)
    def w2_reads(G):
        u, lam = divmod(G, 8); out = []
        for k in range(2):
            s_ = seq[2 * u + k]; r = wf(G, k); t_ = s_['tile']
            if s_['t'] == 'F':
                for h in range(2):
                    out.append(('ds', "ds_read_b64_tr_b16 %s, v%d offset:%d" % (aq(r + 2 * h, 2), V_RF + lam, FSLOT[t_['idx'] % 8] * 8192 + h * 4096), ('w2', G)))
            else:
                out.append(('ds', "ds_read_b128 %s, v%d offset:%d" % (aq(r), s_['rb'], t_['slot'] * 16384 + lam * 2048), ('w2', G)))
        return out
    def h_items(n):
        h = seq[n]['h']
        if h[0] != 'ld': return []
        out = [R("s_add_u32 s%d, s%d, 0x%x" % (O_H, h[1], h[2] + BIG))]
        for e in range(4):
            out.append(('vm', "buffer_load_dwordx4 %s, v%d, %s, s%d offen offset:%d sc1" % (hreg(n, e), V_L16, sq(S_WS), O_H, e * 1024), ('H', n)))
        return out
    BAR2 = 8 - D2
    g2 = Gaps(NU * 64)
    for G in range(NU * 8): g2.g[G * 8 + 7].append(('resv',))
    for G in range(D2, NU * 8): g2.place(w2_reads(G), (G - D2) * 8, (G - D2) * 8 + 7)
    units = []
    for t_ in ftiles[7:]:
        prev = ftiles[t_['idx'] - 8] if t_['idx'] >= 8 else None
        units.append(dict(t=t_, half=None, lo=(prev['last'] + 2 if prev else 0), dl=t_['first'] - 2))
    for t_ in ctiles[2:]:
        prev = ctiles[t_['idx'] - 4] if t_['idx'] >= 4 else None
        for h in range(2): units.append(dict(t=t_, half=h, lo=(prev['last'] + 2 if prev else 1), dl=t_['first'] - 2))
    win = [[] for _ in range(NU)]
    for v in range(NU):
        av = sorted([x for x in units if x['lo'] <= v and 'w' not in x], key=lambda x: x['dl'])
        for x in av:
            if len(win[v]) < 2 or x['dl'] <= v:
                x['w'] = v; win[v].append(x)
    assert all('w' in x and x['w'] <= x['dl'] for x in units), [(x['t'], x['lo'], x['dl'], x.get('w')) for x in units if x.get('w', 99) > x['dl']]
    fl_ld = lambda off: "buffer_load_dword v7, v5, %s, s%d offen offset:%d sc1" % (sq(S_WS), S_FL, off)
    fl_test = "v_cmp_ne_u32 vcc, 0, v7\ns_cmp_eq_u64 vcc, 0"
    for v in range(NU):
        lo = max((v - 1) * 64 + BAR2 * 8, 0); hi = v * 64 + BAR2 * 8
        dl = sum([unit_items(x['t'], x['half']) for x in win[v]], [])
        if dl: g2.place(dl, lo, min(lo + 30, hi))
        hl = []
        if v == 0:
            g2.place([('vm', fl_ld(0), 'flF')], 44, 48)
        elif v == 1:
            hl = [('needvm', ['flF', 'hS']), R(spin("flF", fl_ld(0), fl_test)),
                  ('vm', "buffer_store_dword v6, v4, %s, s%d offen offset:32 sc1" % (sq(S_WS), S_FL), 'setS')] + h_items(5) + h_items(6) + h_items(7)
            g2.place(hl, 64 + 6, 64 + 50)
        else:
            if v == 4: hl.append(('vm', fl_ld(32), 'flS'))
            if v == 6: hl += [('needvm', ['flS']), R(spin("flS", fl_ld(32), fl_test))]
            if v + 2 < NU: hl += h_items(2 * v + 4) + h_items(2 * v + 5)
            if hl: g2.place(hl, v * 64, v * 64 + BAR2 * 8)
    bg = [R("v_and_b32 v8, 12, v0"), R("v_and_b32 v9, 3, v0"), R("v_lshl_add_u32 v8, v8, 2, v9"),
          R("s_lshl2_add_u32 s%d, s%d, s%d\ns_lshl_b32 s%d, s%d, 6" % (T0, S_J, S_B, T0, T0)),
          R("v_lshrrev_b32 v9, 4, v0"), R("v_lshl_add_u32 v9, v9, 3, s%d" % T0),
          R("s_lshl_b32 s%d, s%d, 17" % (T1, T2)), R("v_lshl_add_u32 v8, v8, 11, v9"), R("v_add_u32 v8, s%d, v8" % T1)]
    for e in range(4):
        bg.append(R("s_mov_b32 s%d, 0x%x" % (T0, e * 8192)))
        for lam in range(2):
            bg.append(('vm', "buffer_load_dwordx2 %s, v8, %s, s%d offen offset:%d" % (vq(144 + 4 * e + 2 * lam, 2), sq(S_X), T0, lam * 32), 'tx'))
    for k, p in enumerate((P_DSK, P_B2)):
        for lam in range(2):
            bg.append(('vm', "global_load_dwordx2 %s, v9, s[%d:%d] offset:%d" % (vq(176 + 4 * k + 2 * lam, 2), p, p + 1, lam * 32), 'tx'))
    bg.append(R("v_lshlrev_b32 v8, 1, v8"))
    g2.place(bg, 20 * 64, 21 * 64 + 20)

    for G in range(D2):
        for it in w2_reads(G): st.item(it)
    st.vm_wait(['hF'])
    st.vm("buffer_store_dword v6, v4, %s, s%d offen sc1" % (sq(S_WS), S_FL), 'setF')
    stamp(4)
    i(".p2align 3")
    t = 0
    for G in range(NU * 8):
        u, lam = divmod(G, 8)
        if lam == BAR2 and u + 1 < NU:
            tags = []
            for k in (2 * u + 2, 2 * u + 3):
                tags.append((seq[k]['tile']['kind'], seq[k]['tile']['idx']))
                if seq[k]['h'][0] == 'ld' and u >= 2: tags.append(('H', k))
            if u == 5: tags.append('flS')
            st.vm_wait(tags)
            i("s_barrier")
        if lam == 0: st.vm_wait([('H', k) for k in (2 * u, 2 * u + 1) if seq[k]['h'][0] == 'ld'])
        n = 0
        for e0 in range(4):
            e = e0 if lam % 2 == 0 else 3 - e0
            for k0 in range(2):
                k = k0 ^ t
                st.need([('w2', G)])
                d = vq(acc2(lam, e))
                i("v_mfma_f32_16x16x32_bf16 %s, %s, %s, %s" % (d, aq(wf(G, k)), hreg(2 * u + k, e), "0" if (u == 0 and k0 == 0) else d))
                g2.emit(st, G * 8 + n); n += 1
            t ^= 1
    stamp(5)

    for dl_ in range(1, 4):
        i("s_add_u32 s%d, s%d, %d" % (T0, S_B, dl_)); i("s_and_b32 s%d, s%d, 3" % (T0, T0))
        i("s_sub_u32 s%d, s%d, s%d" % (T1, T0, S_B)); i("s_lshl_b32 s%d, s%d, 17" % (T1, T1))
        i("s_add_u32 s%d, s%d, s%d" % (S_WT + dl_, S_CBO, T1))
        i("s_lshl3_add_u32 s%d, s%d, s%d" % (T0, T0, S_J)); i("s_lshl_b32 s%d, s%d, 5" % (T0, T0)); i("s_add_u32 s%d, s%d, s%d" % (T0, T0, T2))
        i("s_mul_i32 s%d, s%d, 12288" % (T0, T0)); i("s_add_u32 s%d, s%d, 0x%x" % (O_H, T0, P_OFF + (dl_ - 1) * 4096))
        for e in range(4):
            X, Y = acc2(2 * dl_, e), acc2(2 * dl_ + 1, e)
            i("v_cvt_pk_bf16_f32 v%d, v%d, v%d" % (X, X, X + 1)); i("v_cvt_pk_bf16_f32 v%d, v%d, v%d" % (X + 1, X + 2, X + 3))
            i("v_cvt_pk_bf16_f32 v%d, v%d, v%d" % (X + 2, Y, Y + 1)); i("v_cvt_pk_bf16_f32 v%d, v%d, v%d" % (X + 3, Y + 2, Y + 3))
            st.vm("buffer_store_dwordx4 %s, v%d, %s, s%d offen offset:%d sc1" % (vq(X), V_L16, sq(S_WS), O_H, e * 1024), ('P', dl_))
    i("v_cmp_eq_u32 vcc, 0, v0"); i("v_bfrev_b32 v7, 1"); i("s_mov_b32 s%d, 0xffff0000" % T0)
    i("v_cndmask_b32 v4, v7, v0, vcc")
    st.vm_wait(['tx'])
    for k in range(2):
        for lam in range(2):
            src = 176 + 4 * k + 2 * lam; dst = 208 + 8 * k + 4 * lam
            for h in range(2):
                i("v_lshlrev_b32 v%d, 16, v%d" % (dst + 2 * h, src + h)); i("v_and_b32 v%d, s%d, v%d" % (dst + 2 * h + 1, T0, src + h))
    def setflag(dl_):
        st.vm_wait([('P', dl_)])
        st.vm("buffer_store_dword v6, v4, %s, s%d offen offset:%d sc1" % (sq(S_WS), S_WT + dl_, 256 + 4 * (dl_ - 1)), ('PF', dl_))
    for e in range(4):
        sel = "op_sel:[0,%d,0] op_sel_hi:[1,%d,1]" % (e & 1, e & 1)
        for lam in range(2):
            src = 144 + 4 * e + 2 * lam; A = acc2(lam, e)
            for h in range(2):
                t_ = 184 + 2 * h
                i("v_lshlrev_b32 v%d, 16, v%d" % (t_, src + h)); i("v_and_b32 v%d, s%d, v%d" % (t_ + 1, T0, src + h))
            for h in range(2): i("v_pk_mul_f32 %s, %s, %s" % (vq(184 + 2 * h, 2), vq(184 + 2 * h, 2), vq(208 + 4 * lam + 2 * h, 2)))
            if mimic:
                for h in range(2): i("v_cvt_pk_bf16_f32 v%d, v%d, v%d" % (188 + h, 184 + 2 * h, 185 + 2 * h))
                for h in range(2):
                    i("v_lshlrev_b32 v%d, 16, v%d" % (184 + 2 * h, 188 + h)); i("v_and_b32 v%d, s%d, v%d" % (185 + 2 * h, T0, 188 + h))
            for h in range(2):
                i("v_pk_fma_f32 %s, %s, %s, %s %s" % (vq(A + 2 * h, 2), vq(184 + 2 * h, 2), vq(V_GE + (e & 2), 2), vq(A + 2 * h, 2), sel))
                i("v_pk_fma_f32 %s, %s, %s, %s %s" % (vq(A + 2 * h, 2), vq(216 + 4 * lam + 2 * h, 2), vq(V_OMG + (e & 2), 2), vq(A + 2 * h, 2), sel))
    i("v_bfe_u32 v16, v0, 2, 2"); i("v_lshrrev_b32 v17, 4, v0"); i("v_cmp_eq_u32 vcc, v16, v17")
    i("v_and_b32 v16, 1, v0"); i("v_lshlrev_b32 v16, 4, v16"); i("v_mov_b32 v17, 0x3f80"); i("v_lshlrev_b32 v16, v16, v17")
    i("v_cndmask_b32 v16, 0, v16, vcc"); i("v_and_b32 v17, 2, v0"); i("v_cmp_eq_u32 vcc, 0, v17")
    for r in (10, 11, 14, 15): i("v_mov_b32 v%d, 0" % r)
    i("v_cndmask_b32 v12, 0, v16, vcc"); i("v_sub_u32 v13, v16, v12")
    for dl_ in range(1, 4): setflag(dl_)
    i("s_lshl_b32 s%d, s%d, 5" % (T0, S_NI)); i("s_add_u32 s%d, s%d, s%d" % (T0, T0, T2))
    i("s_mul_i32 s%d, s%d, 12288" % (T0, T0)); i("s_add_u32 s%d, s%d, 0x%x" % (O_H, T0, P_OFF))
    a.label("L_pollP")
    i("buffer_load_dwordx3 v[16:18], off, %s, s%d offset:256 sc1" % (sq(S_WS), S_CBO))
    i("s_cmp_eq_u32 s%d, 0" % S_SPIN)
    i("s_cbranch_scc1 L_gotP")
    i("s_sub_u32 s%d, s%d, 1" % (S_SPIN, S_SPIN))
    i("s_waitcnt vmcnt(0)")
    i("v_or3_b32 v16, v16, v17, v18")
    i("v_cmp_ne_u32 vcc, 0, v16")
    i("s_cbranch_vccnz L_pollP")
    a.label("L_gotP")
    i("s_waitcnt vmcnt(0)")
    st.vm_done = st.vm_issued
    stamp(6)
    for dl_ in range(3):
        for e in range(4):
            st.vm("buffer_load_dwordx4 %s, v%d, %s, s%d offen offset:%d sc1" % (aq(16 * dl_ + 4 * e), V_L16, sq(S_WS), O_H, e * 1024), ('R', dl_, e))
        if dl_ < 2: i("s_add_u32 s%d, s%d, 4096" % (O_H, O_H))
    for dl_ in range(3):
        for e in range(4):
            st.vm_wait([('R', dl_, e)])
            for lam in range(2):
                d = vq(acc2(lam, e))
                i("v_mfma_f32_16x16x32_bf16 %s, %s, %s, %s" % (d, vq(12 - 2 * lam), aq(16 * dl_ + 4 * e), d))
    i("s_mov_b32 s%d, 0" % T0); i("s_nop 0")
    for e in range(4):
        if e == 3: i("s_nop 1")
        for lam in range(2):
            st.vm("buffer_store_dwordx4 %s, v8, %s, s%d offen offset:%d %s" % (vq(acc2(lam, e)), sq(S_OUT), T0, lam * 64, outaux))
        if e < 3: i("s_add_u32 s%d, s%d, 16384" % (T0, T0))
    if stamps:
        i("s_waitcnt vmcnt(0)")
        stamp(7)
        i("s_mov_b32 s%d, 0x10000000" % (S_WS + 2))
        i("s_lshl_b32 s%d, s2, 7" % T0); i("s_add_u32 s%d, s%d, 0x%x" % (T0, T0, STAMP_OFF))
        i("v_or_b32 v5, s%d, v0" % S_W); i("v_cmp_eq_u32 vcc, 0, v5"); i("v_bfrev_b32 v7, 1"); i("s_nop 0"); i("v_cndmask_b32 v5, v7, v5, vcc")
        for n in range(8): i("buffer_store_dwordx4 %s, v5, %s, s%d offen offset:%d" % (aq(224 + 4 * n), sq(S_WS), T0, 16 * n))
        if stamps == 2:
            for n in range(8):
                i("v_accvgpr_read_b32 v10, a%d" % (224 + 4 * n))
                i("buffer_atomic_umax v10, v5, %s, 0 offen offset:%d" % (sq(S_DBG), 32 + 4 * n))
            i("v_accvgpr_read_b32 v10, a224"); i("v_not_b32 v10, v10")
            i("buffer_atomic_umax v10, v5, %s, 0 offen offset:28" % sq(S_DBG))
    a.label("L_end")
    i("s_endpgm")
    for name, load, test in slow:
        a.label("L_slow_%s" % name)
        i("s_cmp_eq_u32 s%d, 0" % S_SPIN)
        i("s_cbranch_scc1 L_back_%s" % name)
        i("s_sub_u32 s%d, s%d, 1" % (S_SPIN, S_SPIN))
        for t_ in load.split("\n"): i(t_)
        i("s_waitcnt vmcnt(0)")
        for t_ in test.split("\n"): i(t_)
        i("s_cbranch_scc0 L_slow_%s" % name)
        i("s_branch L_back_%s" % name)
    a.label("L_pad")
    i(".fill (66048 - (L_pad - %s)) / 4, 4, 0xbf810000" % KN)
    a(rodata([descriptor(KN, 512, 102, 256)]))
    return a.text()

if __name__ == "__main__":
    open("k.s", "w").write(gen())
    open("k_st.s", "w").write(gen(stamps=True))
    open("k_st2.s", "w").write(gen(stamps=2))
```
